```python
import torch

def _softmax(x, axis=-1):
    return torch.softmax(x, dim=axis)
def _gelu(x):
    return torch.nn.functional.gelu(x, approximate="tanh")
def _silu(x):
    return torch.nn.functional.silu(x)
def _sigmoid(x):
    return torch.sigmoid(x)
def _layernorm(x, axis=-1, eps=1e-5):
    m = x.mean(dim=axis, keepdim=True)
    v = x.var(dim=axis, keepdim=True, unbiased=False)
    return (x - m) / torch.sqrt(v + eps)
def _scatter_add(tgt, idx, src, axis=0):
    return tgt.clone().index_add_(axis, idx, src)
def _segment_sum(src, seg, n):
    out = torch.zeros((n,) + src.shape[1:], dtype=src.dtype)
    return out.index_add_(0, seg, src)
def _pad(x, pw):
    flat = tuple(v for pair in reversed(pw) for v in pair)
    return torch.nn.functional.pad(x, flat)

kernel_name = 'recurrent_scan__linear_attn_block__geglu_ffn__prompt'

def setup_inputs():

    _w = (lambda a: (lambda t: t.to(torch.bfloat16) if t.is_floating_point() else t)(torch.as_tensor(a)))
    def _A_setup():
        B, S, D = 1, 2048, 512
        return {
            "x": _w((lambda *s: torch.randn(*s, dtype=torch.bfloat16) * 0.05)(B, S, D)),
            "wqkv": _w((lambda *s: torch.randn(*s, dtype=torch.bfloat16) * 0.05)(D, 3 * D)),
            "wo": _w((lambda *s: torch.randn(*s, dtype=torch.bfloat16) * 0.05)(D, D)),
        }
    _A_in = _A_setup()

    def _B_setup():
        B, S, D, F = 1, 2048, 512, 1792
        return {
            "x": _w((lambda *s: torch.randn(*s, dtype=torch.bfloat16) * 0.05)(B, S, D)),
            "w_gate": _w((lambda *s: torch.randn(*s, dtype=torch.bfloat16) * 0.05)(D, F)),
            "w_up": _w((lambda *s: torch.randn(*s, dtype=torch.bfloat16) * 0.05)(D, F)),
            "w_down": _w((lambda *s: torch.randn(*s, dtype=torch.bfloat16) * 0.05)(F, D)),
        }
    _B_in = _B_setup()

    return {
        "A_x": _A_in["x"],
        "A_wqkv": _A_in["wqkv"],
        "A_wo": _A_in["wo"],
        "B_x": _B_in["x"],
        "B_w_gate": _B_in["w_gate"],
        "B_w_up": _B_in["w_up"],
        "B_w_down": _B_in["w_down"],
    }

def reference(A_x, A_wqkv, A_wo, B_x, B_w_gate, B_w_up, B_w_down):
    def _A_ref(x, wqkv, wo):
        B, S, D = x.shape
        H = 32; Dh = D // H
        qkv = (lambda x, *d: x.permute(*d))((x @ wqkv).reshape(B, S, 3, H, Dh), 2, 0, 3, 1, 4)
        q, k, v = qkv[0], qkv[1], qkv[2]
        phi = lambda t: torch.where(t > 0, t + 1, torch.exp(t)) + 1e-6
        pq, pk = phi(q), phi(k)
        kv = torch.einsum("bhsd,bhse->bhde", pk, v)
        z = torch.einsum("bhsd->bhd", pk)
        num = torch.einsum("bhqd,bhde->bhqe", pq, kv)
        den = torch.einsum("bhqd,bhd->bhq", pq, z)[..., None] + 1e-6
        o = num / den
        return (lambda x, *d: x.permute(*d))(o, 0, 2, 1, 3).reshape(B, S, D) @ wo

    def _B_ref(x, w_gate, w_up, w_down):
        return (_gelu(x @ w_gate) * (x @ w_up)) @ w_down

    x = A_x
    xn = _layernorm(x, axis=-1)
    s = _A_ref(xn, A_wqkv, A_wo)
    g = _silu(_B_ref(xn, B_w_gate, B_w_up, B_w_down))
    return x + s * g
```

```python
import re

TRANS = ('v_exp_f32', 'v_log_f32', 'v_rcp_f32', 'v_rsq_f32', 'v_sqrt_f32', 'v_sin_f32', 'v_cos_f32')

_reg1 = re.compile(r'^([vas])(\d+)$')
_regN = re.compile(r'^([vas])\[(\d+):(\d+)\]$')


def parse_reg(tok):
    tok = tok.strip()
    m = _reg1.match(tok)
    if m:
        return [(m.group(1), int(m.group(2)))]
    m = _regN.match(tok)
    if m:
        return [(m.group(1), i) for i in range(int(m.group(2)), int(m.group(3)) + 1)]
    if tok in ('vcc',):
        return [('s', 'vcc')]
    if tok in ('m0',):
        return [('s', 'm0')]
    if tok in ('exec',):
        return [('s', 'exec')]
    if tok.startswith('-') and len(tok) > 1 and tok[1] in 'va':
        return parse_reg(tok[1:])
    m = re.match(r'^\|(.*)\|$', tok)
    if m:
        return parse_reg(m.group(1))
    m = re.match(r'^abs\((.*)\)$', tok)
    if m:
        return parse_reg(m.group(1))
    return []


class Emitter:
    def __init__(self):
        self.lines = []
        self.reset_state()

    def reset_state(self):
        self.t = 0
        self.valu_w = {}
        self.trans_w = {}
        self.mfma_w = {}
        self.mfma_c_r = {}
        self.valu_sw = {}
        self.salu_m0 = -100
        self.store_data = {}
        self.vm = []
        self.lg = []
        self.n_instr = 0

    def raw(self, s):
        self.lines.append(s)

    def comment(self, s):
        self.lines.append('    ; ' + s)

    def label(self, name):
        self.lines.append(name + ':')
        now = self.t
        for d in (self.valu_w, self.trans_w, self.mfma_c_r, self.valu_sw, self.store_data):
            for k in d:
                d[k] = now
        for k in self.mfma_w:
            self.mfma_w[k] = (now, -1, 0)
        self.salu_m0 = now

    def nop(self, n):
        while n > 0:
            k = min(n, 16)
            self.lines.append(f'    s_nop {k - 1}')
            self.t += k
            n -= k

    def _wait_queue(self, q, idx, name):
        n = len(q) - idx - 1
        self.lines.append(f'    s_waitcnt {name}({n})')
        self.t += 1
        del q[:idx + 1]

    def wait_vm_tag(self, tag):
        idx = max((i for i, o in enumerate(self.vm) if o['tag'] == tag), default=-1)
        if idx >= 0:
            self._wait_queue(self.vm, idx, 'vmcnt')

    def wait_vm_all(self):
        if self.vm:
            self.lines.append('    s_waitcnt vmcnt(0)')
            self.t += 1
            self.vm = []

    def wait_lgkm_all(self):
        if self.lg:
            self.lines.append('    s_waitcnt lgkmcnt(0)')
            self.t += 1
            self.lg = []

    def barrier(self):
        self.wait_lgkm_all()
        self.lines.append('    s_barrier')
        self.t += 1

    def _touch(self, regs):
        rs = set(regs)
        idx = -1
        for i, o in enumerate(self.vm):
            if o['regs'] & rs:
                idx = i
        if idx >= 0:
            self._wait_queue(self.vm, idx, 'vmcnt')
        idx = -1
        for i, o in enumerate(self.lg):
            if o['regs'] & rs:
                idx = i
        if idx >= 0:
            self._wait_queue(self.lg, idx, 'lgkmcnt')

    def i(self, text, tag=None):
        text = text.strip()
        sp = text.split(None, 1)
        mn = sp[0]
        rest = sp[1] if len(sp) > 1 else ''
        ops = [o.strip() for o in rest.split(',')] if rest else []
        mods = ''
        if ops:
            last = ops[-1].split(None, 1)
            ops[-1] = last[0]
            mods = last[1] if len(last) > 1 else ''
        need = 0
        T = self.t

        def req(tp, ws):
            nonlocal need
            if tp is None:
                return
            k = ws - (T - tp - 1)
            if k > need:
                need = k

        dst, src = [], []
        kind = 'other'
        if mn.startswith('v_mfma'):
            kind = 'mfma'
            d = parse_reg(ops[0]); a = parse_reg(ops[1]); b = parse_reg(ops[2]); c = parse_reg(ops[3])
            self._touch(d + a + b + c)
            for r in a + b:
                req(self.valu_w.get(r), 2)
                if r in self.mfma_w:
                    req(self.mfma_w[r][0], 8)
            for r in c:
                req(self.valu_w.get(r), 2)
                if r in self.mfma_w:
                    tp, first, n = self.mfma_w[r]
                    same = (c[0] == first and len(c) == n)
                    req(tp, 0 if same else 6)
            for r in d:
                if r in self.mfma_w and r not in c:
                    req(self.mfma_w[r][0], 8)
            self._finish(text, need)
            for r in d:
                self.mfma_w[r] = (self.t - 1, d[0], len(d))
                self.valu_w.pop(r, None)
            for r in c:
                self.mfma_c_r[r] = self.t - 1
            return

        if mn.startswith('v_'):
            kind = 'valu'
            if mn.startswith('v_cmp'):
                dst = parse_reg(ops[0]); src = [r for o in ops[1:] for r in parse_reg(o)]
            elif mn in ('v_readfirstlane_b32', 'v_readlane_b32'):
                dst = parse_reg(ops[0]); src = [r for o in ops[1:] for r in parse_reg(o)]
            else:
                dst = parse_reg(ops[0]); src = [r for o in ops[1:] for r in parse_reg(o)]
                if mn.startswith(('v_fmac', 'v_mac', 'v_pk_fmac')):
                    src = src + dst
                if mn.startswith(('v_add_co', 'v_sub_co', 'v_addc_co', 'v_subb_co')):
                    dst = dst + parse_reg(ops[1])
                    src = [r for o in ops[2:] for r in parse_reg(o)]
            if mn.startswith('v_cndmask') and len(ops) == 3:
                src = src + [('s', 'vcc')]
            is_dpp = '_dpp' in mn or 'row_' in mods or 'quad_perm' in mods
            self._touch(dst + src)
            for r in src:
                if r[0] in 'va':
                    if r in self.mfma_w:
                        req(self.mfma_w[r][0], 8)
                    req(self.trans_w.get(r), 1)
                    if mn in ('v_readfirstlane_b32', 'v_readlane_b32'):
                        req(self.valu_w.get(r), 1)
                    if is_dpp:
                        req(self.valu_w.get(r), 2)
                else:
                    req(self.valu_sw.get(r), 2)
            for r in dst:
                if r[0] in 'va':
                    if r in self.mfma_w:
                        req(self.mfma_w[r][0], 8)
                    req(self.mfma_c_r.get(r), 3)
                    req(self.store_data.get(r), 2)
            self._finish(text, need)
            for r in dst:
                if r[0] in 'va':
                    self.valu_w[r] = self.t - 1
                    self.mfma_w.pop(r, None)
                    if mn in TRANS:
                        self.trans_w[r] = self.t - 1
                    else:
                        self.trans_w.pop(r, None)
                else:
                    self.valu_sw[r] = self.t - 1
            return

        if mn.startswith('buffer_') or mn.startswith('ds_'):
            is_ds = mn.startswith('ds_')
            lds_dma = (not is_ds) and re.search(r'\blds\b', mods) is not None
            sregs = []
            if is_ds:
                if mn.startswith('ds_read'):
                    dst = parse_reg(ops[0]); src = parse_reg(ops[1])
                elif mn.startswith('ds_write'):
                    src = [r for o in ops for r in parse_reg(o)]
                elif mn.startswith(('ds_bpermute', 'ds_permute', 'ds_swizzle')):
                    dst = parse_reg(ops[0]); src = [r for o in ops[1:] for r in parse_reg(o)]
                else:
                    raise ValueError('unhandled ds op ' + text)
            else:
                if mn.startswith('buffer_load'):
                    if lds_dma:
                        src = parse_reg(ops[0]); sregs = parse_reg(ops[1]) + parse_reg(ops[2])
                    else:
                        dst = parse_reg(ops[0]); src = parse_reg(ops[1]); sregs = parse_reg(ops[2]) + parse_reg(ops[3])
                        if '_d16' in mn:
                            src = src + dst
                elif mn.startswith(('buffer_store', 'buffer_atomic')):
                    src = parse_reg(ops[0]) + parse_reg(ops[1]); sregs = parse_reg(ops[2]) + parse_reg(ops[3])
                else:
                    raise ValueError('unhandled buffer op ' + text)
            self._touch(dst + src)
            for r in src + dst:
                if r in self.mfma_w:
                    req(self.mfma_w[r][0], 8)
            for r in dst:
                req(self.store_data.get(r), 1)
            for r in sregs:
                req(self.valu_sw.get(r), 5)
            if lds_dma:
                req(self.salu_m0, 1)
            self._finish(text, need)
            q = self.lg if is_ds else self.vm
            q.append(dict(regs=set(dst), tag=tag))
            lim = 15 if is_ds else 63
            if len(q) > lim:
                self._wait_queue(q, len(q) - lim - 1, 'lgkmcnt' if is_ds else 'vmcnt')
            for r in dst:
                self.mfma_w.pop(r, None)
                self.valu_w.pop(r, None)
                self.trans_w.pop(r, None)
            if (not is_ds) and mn.startswith(('buffer_store_dwordx3', 'buffer_store_dwordx4')):
                for r in parse_reg(ops[0]):
                    self.store_data[r] = self.t - 1
            return

        if mn.startswith('s_'):
            if mn == 's_waitcnt':
                m = re.search(r'vmcnt\((\d+)\)', text)
                if m:
                    n = int(m.group(1))
                    if len(self.vm) > n:
                        del self.vm[:len(self.vm) - n]
                m = re.search(r'lgkmcnt\((\d+)\)', text)
                if m:
                    n = int(m.group(1))
                    if len(self.lg) > n:
                        del self.lg[:len(self.lg) - n]
                self._finish(text, 0)
                return
            if mn == 's_nop':
                self.lines.append('    ' + text)
                self.t += int(ops[0], 0) + 1
                return
            if mn == 's_barrier':
                assert not self.lg, 's_barrier with LDS ops outstanding'
                self._finish(text, 0)
                return
            no_dst = mn.startswith(('s_cmp', 's_branch', 's_cbranch', 's_endpgm', 's_setprio', 's_sleep', 's_bitcmp'))
            if no_dst:
                src = [r for o in ops for r in parse_reg(o)]
            else:
                dst = parse_reg(ops[0]); src = [r for o in ops[1:] for r in parse_reg(o)]
            for r in src:
                req(self.valu_sw.get(r), 1)
            self._finish(text, need)
            for r in dst:
                self.valu_sw.pop(r, None)
                if r == ('s', 'm0'):
                    self.salu_m0 = self.t - 1
            return

        raise ValueError('unhandled instruction: ' + text)

    def _finish(self, text, need):
        if need > 0:
            self.nop(need)
        self.lines.append('    ' + text)
        self.t += 1
        self.n_instr += 1

    def text(self):
        return '\n'.join(self.lines) + '\n'
```

```python
from gen import *

K1_STAGE = 40960
K1_LDS = 2 * K1_STAGE

V_LANE16, V_AOFF0, V_AOFF1, V_LRD0, V_LRD1 = 1, 2, 3, 4, 5
V_HLANE, V_LANE8, V_LANE4, V_REDW, V_REDR = 6, 7, 8, 9, 10
V_ONES = 12
ACC = 16
AFR = 96
BFR = 120
TMP = 160
V_C1, V_C2 = 204, 205
K1_VGPRS = 208

S_RB, S_CG, S_WAVE = 32, 33, 34
S_TB = 36
S_TBSEL = 46
S_LDSW = 51
S_4K = 52
S_T0, S_T1, S_T2 = 55, 56, 57
S_HB, S_PQB, S_KVB = 58, 59, 60
S_JB, S_QB = 61, 62
S_CMP = 64
K1_SGPRS = 80

GELU_C1 = -2.0 * SQRT2PI * LOG2E
GELU_C2 = GELU_C1 * 0.044715

VARIANTS = {}
VARIANTS['Q1F4'] = dict(
    cg=(0, 16),
    slots=[('Q', 0, 2), ('Q', 1, 2)] + [s for u in range(4) for s in (('G', 96 + u, 4), ('U', 208 + u, 4))],
    units=[('Q', 0, (0, 2)), ('Q', 1, (1, 2))] + [('F', (2 + 2 * u, 3 + 2 * u), (u, 4)) for u in range(4)],
)
VARIANTS['K5'] = dict(
    cg=(16, 22),
    slots=[s for u in range(5) for s in (('K', 32 - 80 + u, 5), ('V', 64 - 80 + u, 5))],
    units=[('K', (2 * u, 2 * u + 1), (u - 80, 5)) for u in range(5)],
)
VARIANTS['K2F3'] = dict(
    cg=(22, 23),
    slots=[('K', 62, 0), ('V', 94, 0), ('K', 63, 0), ('V', 95, 0)] +
          [s for u in range(3) for s in (('G', 96 + 64 + u, 0), ('U', 208 + 64 + u, 0))],
    units=[('K', (0, 1), (30, 0)), ('K', (2, 3), (31, 0))] + [('F', (4 + 2 * u, 5 + 2 * u), (64 + u, 0)) for u in range(3)],
)
VARIANTS['F5'] = dict(
    cg=(23, 32),
    slots=[s for u in range(5) for s in (('G', 96 - 48 + u, 5), ('U', 208 - 48 + u, 5))],
    units=[('F', (2 * u, 2 * u + 1), (u - 48, 5)) for u in range(5)],
)


def acc(nt, mt):
    return ACC + (nt * 2 + mt) * 4


def vr(b, n):
    return f'v[{b}:{b + n - 1}]'


def k1_prologue(e):
    load_ptrs(e)
    make_srd(e, 28, 26, WS_SIZE)
    e.i(f's_lshr_b32 s{S_RB}, s2, 5')
    e.i(f's_and_b32 s{S_CG}, s2, 31')
    e.i('v_lshrrev_b32 v11, 6, v0')
    e.i(f'v_readfirstlane_b32 s{S_WAVE}, v11')
    e.i(f'v_and_b32 v11, 63, v0')
    e.i(f'v_lshlrev_b32 v{V_LANE16}, 4, v11')
    e.i(f's_lshl_b32 s{S_T0}, s{S_RB}, 4')
    e.i(f's_lshl_b32 s{S_T1}, s{S_WAVE}, 1')
    e.i(f's_add_u32 s{S_T0}, s{S_T0}, s{S_T1}')
    e.i(f's_lshl_b32 s{S_T1}, s{S_T0}, 14')
    e.i(f'v_add_u32 v{V_AOFF0}, s{S_T1}, v{V_LANE16}')
    e.i(f'v_add_u32 v{V_AOFF1}, 16384, v{V_AOFF0}')
    e.i(f'v_mov_b32 v{V_LRD0}, v{V_LANE16}')
    e.i(f'v_add_u32 v{V_LRD1}, {K1_STAGE}, v{V_LANE16}')
    e.i(f's_mov_b32 s{S_4K}, 4096')
    e.i(f's_mov_b32 s{S_4K + 1}, 8192')
    e.i(f's_mov_b32 s{S_4K + 2}, 12288')
    e.i(f's_mul_i32 s{S_HB}, s{S_T0}, {112 * 512}')
    e.i(f's_add_u32 s{S_HB}, s{S_HB}, {hx(HH)}')
    e.i(f's_lshl_b32 s{S_PQB}, s{S_T0}, 14')
    e.i(f's_add_u32 s{S_PQB}, s{S_PQB}, {hx(PQ)}')


def k1_tiles(e, V):
    for nt, (kind, a, b) in enumerate(V['slots']):
        if b:
            e.i(f's_mul_i32 s{S_TB + nt}, s{S_CG}, {b * 16384}')
            e.i(f's_add_u32 s{S_TB + nt}, s{S_TB + nt}, {hx(PW1 + a * 16384)}')
        else:
            e.i(f's_mov_b32 s{S_TB + nt}, {hx(PW1 + a * 16384)}')
    e.i(f's_lshr_b32 s{S_T0}, s{S_WAVE}, 1')
    e.i(f's_lshl_b32 s{S_T1}, s{S_T0}, 10')
    e.i(f's_mul_i32 s{S_LDSW}, s{S_T0}, 10240')
    e.i(f's_and_b32 s{S_T2}, s{S_WAVE}, 1')
    for i in range(5):
        e.i(f's_cselect_b32 s{S_TBSEL + i}, s{S_TB + 5 + i}, s{S_TB + i}')
    for i in range(5):
        e.i(f's_add_u32 s{S_TBSEL + i}, s{S_TBSEL + i}, s{S_T1}')
    e.i(f's_mul_i32 s{S_T2}, s{S_T2}, 5120')
    e.i(f's_add_u32 s{S_LDSW}, s{S_LDSW}, s{S_T2}')


def k1_mainloop(e, V):
    orient = ['N' if k in ('K', 'V') else 'T' for (k, a, b) in V['slots']]

    def dma(chunk):
        stage = chunk & 1
        for i in range(5):
            e.i(f's_add_u32 m0, s{S_LDSW}, {stage * K1_STAGE + i * 1024}')
            e.i(f's_add_u32 s{S_T0}, s{S_TBSEL + i}, {chunk * 4096}')
            e.i(f'buffer_load_dwordx4 v{V_LANE16}, s[28:31], s{S_T0} offen lds', tag=f'dma{chunk}')

    def aload(s):
        buf = AFR + (s % 3) * 8
        soff = ['0', f's{S_4K}', f's{S_4K + 1}', f's{S_4K + 2}'][s >> 2]
        for mt in range(2):
            e.i(f'buffer_load_dwordx4 {vr(buf + 4 * mt, 4)}, v{V_AOFF0 + mt}, s[28:31], {soff} offen offset:{(s & 3) * 1024}')

    def bread(chunk, ks, half):
        va = V_LRD0 + (chunk & 1)
        for i in range(5):
            nt = half * 5 + i
            e.i(f'ds_read_b128 {vr(BFR + half * 20 + 4 * i, 4)}, v{va} offset:{(ks * 10 + nt) * 1024}')

    def mfmas(s, half):
        abuf = AFR + (s % 3) * 8
        for i in range(5):
            nt = half * 5 + i
            bf = vr(BFR + half * 20 + 4 * i, 4)
            for mt in range(2):
                af = vr(abuf + 4 * mt, 4)
                d = vr(acc(nt, mt), 4)
                c = '0' if s == 0 else d
                if orient[nt] == 'T':
                    e.i(f'v_mfma_f32_16x16x32_bf16 {d}, {bf}, {af}, {c}')
                else:
                    e.i(f'v_mfma_f32_16x16x32_bf16 {d}, {af}, {bf}, {c}')

    dma(0)
    dma(1)
    aload(0)
    aload(1)
    return dma, aload, bread, mfmas


def k1_run(e, V, hooks):
    dma, aload, bread, mfmas = hooks
    e.wait_vm_tag('dma0')
    e.barrier()
    bread(0, 0, 0)
    for c in range(4):
        if 1 <= c <= 2:
            dma(c + 1)
        for ks in range(4):
            s = 4 * c + ks
            if s + 2 < 16:
                aload(s + 2)
            bread(c, ks, 1)
            mfmas(s, 0)
            if ks < 3:
                bread(c, ks + 1, 0)
            mfmas(s, 1)
        if c < 3:
            e.wait_vm_tag(f'dma{c + 1}')
            e.barrier()
            bread(c + 1, 0, 0)


def round4(e, src, dst, t0, t1):
    e.i(f'v_cvt_pk_bf16_f32 v{t0}, v{src[0]}, v{src[1]}')
    e.i(f'v_cvt_pk_bf16_f32 v{t1}, v{src[2]}, v{src[3]}')
    e.i(f'v_lshlrev_b32 v{dst[0]}, 16, v{t0}')
    e.i(f'v_and_b32 v{dst[1]}, 0xffff0000, v{t0}')
    e.i(f'v_lshlrev_b32 v{dst[2]}, 16, v{t1}')
    e.i(f'v_and_b32 v{dst[3]}, 0xffff0000, v{t1}')


def phi4(e, x, out, tb):
    A = [tb + r for r in range(4)]
    E = [tb + 4 + r for r in range(4)]
    P = [tb + 8 + r for r in range(4)]
    for r in range(4):
        e.i(f'v_mul_f32 v{E[r]}, {hx(f32bits(LOG2E))}, v{x[r]}')
    for r in range(4):
        e.i(f'v_exp_f32 v{E[r]}, v{E[r]}')
    for r in range(4):
        e.i(f'v_add_f32 v{A[r]}, 1.0, v{x[r]}')
    for r in range(4):
        e.i(f'v_cmp_lt_f32 s[{S_CMP + 2 * r}:{S_CMP + 2 * r + 1}], 0, v{x[r]}')
    for r in range(4):
        e.i(f'v_cvt_pk_bf16_f32 v{P[r]}, v{A[r]}, v{E[r]}')
    for r in range(4):
        e.i(f'v_lshlrev_b32 v{A[r]}, 16, v{P[r]}')
    for r in range(4):
        e.i(f'v_and_b32 v{E[r]}, 0xffff0000, v{P[r]}')
    for r in range(4):
        e.i(f'v_add_f32 v{E[r]}, {hx(f32bits(1e-6))}, v{E[r]}')
    for r in range(4):
        e.i(f'v_cndmask_b32 v{out[r]}, v{E[r]}, v{A[r]}, s[{S_CMP + 2 * r}:{S_CMP + 2 * r + 1}]')


def epi_Q(e, slot, head_ab):
    a, b = head_ab
    for mt in range(2):
        src = [acc(slot, mt) + r for r in range(4)]
        X = [TMP + r for r in range(4)]
        O = [TMP + 4 + r for r in range(4)]
        round4(e, src, X, TMP + 8, TMP + 9)
        phi4(e, X, O, TMP + 10)
        e.i(f'v_cvt_pk_bf16_f32 v{TMP + 22}, v{O[0]}, v{O[1]}')
        e.i(f'v_cvt_pk_bf16_f32 v{TMP + 23}, v{O[2]}, v{O[3]}')
        e.i(f's_add_u32 s{S_T0}, s{S_QB}, {hx(mt * 16384 + a * 512)}')
        e.i(f'buffer_store_dwordx2 {vr(TMP + 22, 2)}, v{V_LANE8}, s[28:31], s{S_T0} offen')


def epi_F(e, slots, j_ab):
    sg, su = slots
    a, b = j_ab
    for mt in range(2):
        g = [acc(sg, mt) + r for r in range(4)]
        u = [acc(su, mt) + r for r in range(4)]
        X = [TMP + r for r in range(4)]
        Y = [TMP + 4 + r for r in range(4)]
        U = [TMP + 8 + r for r in range(4)]
        round4(e, g, X, TMP + 12, TMP + 13)
        for r in range(4):
            e.i(f'v_mul_f32 v{Y[r]}, v{X[r]}, v{X[r]}')
        for r in range(4):
            e.i(f'v_fma_f32 v{Y[r]}, v{Y[r]}, v{V_C2}, v{V_C1}')
        for r in range(4):
            e.i(f'v_mul_f32 v{Y[r]}, v{X[r]}, v{Y[r]}')
        for r in range(4):
            e.i(f'v_exp_f32 v{Y[r]}, v{Y[r]}')
        for r in range(4):
            e.i(f'v_add_f32 v{Y[r]}, 1.0, v{Y[r]}')
        for r in range(4):
            e.i(f'v_rcp_f32 v{Y[r]}, v{Y[r]}')
        for r in range(4):
            e.i(f'v_mul_f32 v{Y[r]}, v{X[r]}, v{Y[r]}')
        round4(e, Y, Y, TMP + 12, TMP + 13)
        round4(e, u, U, TMP + 14, TMP + 15)
        for r in range(4):
            e.i(f'v_mul_f32 v{Y[r]}, v{Y[r]}, v{U[r]}')
        e.i(f'v_cvt_pk_bf16_f32 v{TMP + 16}, v{Y[0]}, v{Y[1]}')
        e.i(f'v_cvt_pk_bf16_f32 v{TMP + 17}, v{Y[2]}, v{Y[3]}')
        e.i(f's_add_u32 s{S_T0}, s{S_JB}, {hx(mt * 112 * 512 + a * 512)}')
        e.i(f'buffer_store_dwordx2 {vr(TMP + 16, 2)}, v{V_HLANE}, s[28:31], s{S_T0} offen')


def epi_K(e, slots, res):
    sk, sv = slots
    PK = [TMP + 24 + r for r in range(8)]
    for mt in range(2):
        src = [acc(sk, mt) + r for r in range(4)]
        X = [TMP + r for r in range(4)]
        round4(e, src, X, TMP + 8, TMP + 9)
        phi4(e, X, PK[4 * mt:4 * mt + 4], TMP + 10)
    AF = TMP + 32
    BF = TMP + 36
    e.i(f'v_cvt_pk_bf16_f32 v{AF}, v{PK[0]}, v{PK[1]}')
    e.i(f'v_cvt_pk_bf16_f32 v{AF + 1}, v{PK[2]}, v{PK[3]}')
    e.i(f'v_cvt_pk_bf16_f32 v{AF + 2}, v{PK[4]}, v{PK[5]}')
    e.i(f'v_cvt_pk_bf16_f32 v{AF + 3}, v{PK[6]}, v{PK[7]}')
    for mt in range(2):
        v0 = acc(sv, mt)
        e.i(f'v_cvt_pk_bf16_f32 v{BF + 2 * mt}, v{v0}, v{v0 + 1}')
        e.i(f'v_cvt_pk_bf16_f32 v{BF + 2 * mt + 1}, v{v0 + 2}, v{v0 + 3}')
    e.i(f'v_mfma_f32_16x16x32_bf16 {vr(res, 4)}, {vr(AF, 4)}, {vr(BF, 4)}, 0')
    e.i(f'v_mfma_f32_16x16x32_bf16 {vr(res + 4, 4)}, {vr(AF, 4)}, {vr(V_ONES, 4)}, 0')


def k1_epilogue(e, V, vname):
    kunits = [u for u in V['units'] if u[0] == 'K']
    has_f = any(u[0] == 'F' for u in V['units'])
    e.i('v_and_b32 v11, 63, v0')
    e.i(f'v_lshlrev_b32 v{V_LANE8}, 3, v11')
    e.i(f'v_lshlrev_b32 v{V_LANE4}, 2, v11')
    e.i(f'v_lshrrev_b32 v{TMP}, 5, v11')
    e.i(f'v_lshlrev_b32 v{TMP}, 8, v{TMP}')
    e.i(f'v_and_b32 v{TMP + 1}, 15, v11')
    e.i(f'v_lshl_add_u32 v{TMP}, v{TMP + 1}, 4, v{TMP}')
    e.i(f'v_bfe_u32 v{TMP + 1}, v11, 4, 1')
    e.i(f'v_lshl_add_u32 v{V_HLANE}, v{TMP + 1}, 3, v{TMP}')
    if has_f:
        e.i(f'v_mov_b32 v{V_C1}, {hx(f32bits(GELU_C1))}')
        e.i(f'v_mov_b32 v{V_C2}, {hx(f32bits(GELU_C2))}')
    fb = [u[2][1] for u in V['units'] if u[0] == 'F']
    qb = [u[2][1] for u in V['units'] if u[0] == 'Q']
    assert len(set(fb)) <= 1 and len(set(qb)) <= 1
    if fb:
        e.i(f's_mul_i32 s{S_JB}, s{S_CG}, {fb[0] * 512}')
        e.i(f's_add_u32 s{S_JB}, s{S_JB}, s{S_HB}')
    if qb:
        e.i(f's_mul_i32 s{S_QB}, s{S_CG}, {qb[0] * 512}')
        e.i(f's_add_u32 s{S_QB}, s{S_QB}, s{S_PQB}')
    if kunits:
        for r in range(4):
            e.i(f'v_mov_b32 v{V_ONES + r}, 0x3f803f80')
    res_base = BFR
    ki = 0
    kinfo = []
    for u in V['units']:
        if u[0] == 'Q':
            epi_Q(e, u[1], u[2])
        elif u[0] == 'F':
            epi_F(e, u[1], u[2])
        else:
            epi_K(e, u[1], res_base + 8 * ki)
            kinfo.append(u[2])
            ki += 1
    if not kunits:
        return
    nt = 2 * len(kunits)
    e.barrier()
    e.i(f's_lshl_b32 s{S_T0}, s{S_WAVE}, 10')
    e.i(f'v_add_u32 v{V_REDW}, s{S_T0}, v{V_LANE16}')
    e.i(f'v_add_u32 v{TMP + 40}, 65536, v{V_REDW}')
    for t in range(nt):
        base = V_REDW if t < 8 else TMP + 40
        e.i(f'ds_write_b128 v{base}, {vr(res_base + 4 * t, 4)} offset:{(t & 7) * 8192}')
    e.barrier()
    a, b = kinfo[0]
    e.i(f's_mul_i32 s{S_KVB}, s{S_CG}, {b * 2048}')
    e.i(f's_add_u32 s{S_KVB}, s{S_KVB}, {hx(KV + a * 2048)}')
    e.i(f's_lshl_b32 s{S_T0}, s{S_WAVE}, 13')
    e.i(f'v_add_u32 v{V_REDR}, s{S_T0}, v{V_LANE16}')
    for rep in range(2):
        lbl = f'K1_{vname}_RED{rep}'
        if rep == 1:
            if nt <= 8:
                break
            e.i(f'v_add_u32 v{V_REDR}, 65536, v{V_REDR}')
        e.i(f's_cmp_ge_u32 s{S_WAVE}, {nt - 8 * rep}')
        e.i(f's_cbranch_scc1 {lbl}_SKIP')
        R = TMP
        for w in range(8):
            e.i(f'ds_read_b128 {vr(R + 4 * w, 4)}, v{V_REDR} offset:{w * 1024}')
        for r in range(4):
            e.i(f'v_add_f32 v{R + r}, v{R + r}, v{R + 4 + r}')
            e.i(f'v_add_f32 v{R + 8 + r}, v{R + 8 + r}, v{R + 12 + r}')
            e.i(f'v_add_f32 v{R + 16 + r}, v{R + 16 + r}, v{R + 20 + r}')
            e.i(f'v_add_f32 v{R + 24 + r}, v{R + 24 + r}, v{R + 28 + r}')
        for r in range(4):
            e.i(f'v_add_f32 v{R + r}, v{R + r}, v{R + 8 + r}')
            e.i(f'v_add_f32 v{R + 16 + r}, v{R + 16 + r}, v{R + 24 + r}')
        for r in range(4):
            e.i(f'v_add_f32 v{R + r}, v{R + r}, v{R + 16 + r}')
        e.i(f's_lshl_b32 s{S_T0}, s{S_WAVE}, 10')
        e.i(f's_add_u32 s{S_T0}, s{S_T0}, s{S_KVB}')
        if rep:
            e.i(f's_add_u32 s{S_T0}, s{S_T0}, 8192')
        for r in range(4):
            e.i(f'buffer_atomic_add_f32 v{R + r}, v{V_LANE4}, s[28:31], s{S_T0} offen offset:{r * 256}')
        e.label(f'{lbl}_SKIP')


def gen_k1(e):
    e.reset_state()
    kernel_header(e, K1_NAME)
    e.i('s_cmp_ge_u32 s2, 256')
    e.i('s_cbranch_scc1 K1_END')
    k1_prologue(e)
    names = list(VARIANTS)
    for n in names[:-1]:
        lo, hi = VARIANTS[n]['cg']
        e.i(f's_cmp_lt_u32 s{S_CG}, {hi}')
        e.i(f's_cbranch_scc1 K1_V_{n}')
    e.i(f's_branch K1_V_{names[-1]}')
    for n in names:
        V = VARIANTS[n]
        e.label(f'K1_V_{n}')
        k1_tiles(e, V)
        hooks = k1_mainloop(e, V)
        k1_run(e, V, hooks)
        k1_epilogue(e, V, n)
        e.i('s_branch K1_END')
    e.label('K1_END')
    e.i('s_endpgm')
```

```python
from gen import *

K2_LDS = 131072
K2_AGPRS = 128

V_LANE16, V_LANE8, V_LANE4 = 1, 2, 3
V_XOFF = 4
V_REDW, V_REDR = 5, 6
V_C = 8
FB = 16
KVF = 112
PQB = 144
WOF = 152
OF = 168
TMP = 172
K2_VGPRS = 236

S_RB, S_CB, S_WAVE = 32, 33, 34
S_WD = 36
S_HB = 40
S_WO = 44
S_PQ = 48
S_KVB = 52
S_T0, S_T1, S_T2, S_T3 = 53, 54, 55, 56
S_XO = 57
K2_SGPRS = 80


def vr(b, n):
    return f'v[{b}:{b + n - 1}]'


def ar(b, n):
    return f'a[{b}:{b + n - 1}]'


def accf(mt, nt):
    return (mt * 4 + nt) * 4


def accs(mt, nt):
    return 64 + (mt * 4 + nt) * 4


def gen_k2(e):
    e.reset_state()
    kernel_header(e, K2_NAME)
    e.i('s_cmp_ge_u32 s2, 256')
    e.i('s_cbranch_scc1 K2_END')
    load_ptrs(e)
    make_srd(e, 28, 26, WS_SIZE)
    make_srd(e, 60, 8, S * D * 2)
    make_srd(e, 64, 22, S * D * 2)
    e.i(f's_and_b32 s{S_RB}, s2, 31')
    e.i(f's_lshr_b32 s{S_CB}, s2, 5')
    e.i('v_lshrrev_b32 v7, 6, v0')
    e.i(f'v_readfirstlane_b32 s{S_WAVE}, v7')
    e.i('v_and_b32 v7, 63, v0')
    e.i(f'v_lshlrev_b32 v{V_LANE16}, 4, v7')
    e.i(f'v_lshlrev_b32 v{V_LANE8}, 3, v7')
    e.i(f'v_lshlrev_b32 v{V_LANE4}, 2, v7')
    e.i(f's_mul_i32 s{S_T0}, s{S_WAVE}, {14 * 1024}')
    e.i(f's_mul_i32 s{S_T1}, s{S_CB}, {4 * 56 * 1024}')
    e.i(f's_add_u32 s{S_T1}, s{S_T1}, s{S_T0}')
    for nt in range(4):
        e.i(f's_add_u32 s{S_WD + nt}, s{S_T1}, {hx(PWD + nt * 56 * 1024)}')
    e.i(f's_mul_i32 s{S_T1}, s{S_RB}, {4 * 56 * 1024}')
    e.i(f's_add_u32 s{S_T1}, s{S_T1}, s{S_T0}')
    for mt in range(4):
        e.i(f's_add_u32 s{S_HB + mt}, s{S_T1}, {hx(HH + mt * 56 * 1024)}')
    def dload(i):
        buf = FB + (i % 3) * 32
        for nt in range(4):
            e.i(f's_add_u32 s{S_T2}, s{S_WD + nt}, {i * 1024}')
            e.i(f'buffer_load_dwordx4 {vr(buf + 4 * nt, 4)}, v{V_LANE16}, s[28:31], s{S_T2} offen')
        for mt in range(4):
            e.i(f's_add_u32 s{S_T3}, s{S_HB + mt}, {i * 1024}')
            e.i(f'buffer_load_dwordx4 {vr(buf + 16 + 4 * mt, 4)}, v{V_LANE16}, s[28:31], s{S_T3} offen')
    dload(0)
    dload(1)
    e.i(f's_lshl_b32 s{S_T0}, s{S_WAVE}, 12')
    e.i(f's_lshl_b32 s{S_T1}, s{S_CB}, 16')
    e.i(f's_add_u32 s{S_T1}, s{S_T1}, s{S_T0}')
    for nt in range(4):
        e.i(f's_add_u32 s{S_WO + nt}, s{S_T1}, {hx(PWO + nt * 16384)}')
    e.i(f's_lshl_b32 s{S_T1}, s{S_RB}, 16')
    e.i(f's_add_u32 s{S_T1}, s{S_T1}, s{S_T0}')
    for mt in range(4):
        e.i(f's_add_u32 s{S_PQ + mt}, s{S_T1}, {hx(PQ + mt * 16384)}')
    e.i(f's_lshl_b32 s{S_KVB}, s{S_WAVE}, 14')
    e.i(f's_add_u32 s{S_KVB}, s{S_KVB}, {hx(KV)}')

    def kv_tmp(q):
        return (FB + 64 + q * 4) if q < 8 else (TMP + (q - 8) * 4)
    for q in range(16):
        tb = kv_tmp(q)
        for i in range(4):
            e.i(f'buffer_load_dword v{tb + i}, v{V_LANE4}, s[28:31], s{S_KVB} offen offset:{(q * 1024) % 4096 + i * 256}')
        if q % 4 == 3 and q != 15:
            e.i(f's_add_u32 s{S_KVB}, s{S_KVB}, 4096')
    for q in range(16):
        tb = kv_tmp(q)
        d = KVF + (q >> 1) * 4 + (q & 1) * 2
        e.i(f'v_cvt_pk_bf16_f32 v{d}, v{tb}, v{tb + 1}')
        e.i(f'v_cvt_pk_bf16_f32 v{d + 1}, v{tb + 2}, v{tb + 3}')

    def pqload(hp, mt):
        buf = PQB + ((hp * 4 + mt) & 1) * 4
        for hh in range(2):
            e.i(f's_add_u32 s{S_T2}, s{S_PQ + mt}, {(hp * 2 + hh) * 512}')
            e.i(f'buffer_load_dwordx2 {vr(buf + 2 * hh, 2)}, v{V_LANE8}, s[28:31], s{S_T2} offen')

    pqload(0, 0)
    for hp in range(4):
        for nt in range(4):
            e.i(f's_add_u32 s{S_T2}, s{S_WO + nt}, {hp * 1024}')
            e.i(f'buffer_load_dwordx4 {vr(WOF + 4 * nt, 4)}, v{V_LANE16}, s[28:31], s{S_T2} offen')
        for mt in range(4):
            idx = hp * 4 + mt
            if idx + 1 < 16:
                pqload((idx + 1) >> 2, (idx + 1) & 3)
            buf = PQB + (idx & 1) * 4
            NUM = TMP
            DEN = TMP + 8
            for hh in range(2):
                kvf = KVF + (hp * 2 + hh) * 4
                e.i(f'v_mfma_f32_16x16x16_bf16 {vr(NUM + 4 * hh, 4)}, {vr(kvf, 2)}, {vr(buf + 2 * hh, 2)}, 0')
                e.i(f'v_mfma_f32_16x16x16_bf16 {vr(DEN + 4 * hh, 4)}, {vr(kvf + 2, 2)}, {vr(buf + 2 * hh, 2)}, 0')
            for hh in range(2):
                n = [NUM + 4 * hh + r for r in range(4)]
                dn = DEN + 4 * hh
                t = TMP + 16 + hh * 8
                e.i(f'v_cvt_pk_bf16_f32 v{t}, v{dn}, v{dn}')
                e.i(f'v_lshlrev_b32 v{t}, 16, v{t}')
                e.i(f'v_add_f32 v{t}, {hx(f32bits(1e-6))}, v{t}')
                e.i(f'v_cvt_pk_bf16_f32 v{t}, v{t}, v{t}')
                e.i(f'v_lshlrev_b32 v{t}, 16, v{t}')
                e.i(f'v_rcp_f32 v{t}, v{t}')
                e.i(f'v_cvt_pk_bf16_f32 v{t + 1}, v{n[0]}, v{n[1]}')
                e.i(f'v_cvt_pk_bf16_f32 v{t + 2}, v{n[2]}, v{n[3]}')
                e.i(f'v_lshlrev_b32 v{n[0]}, 16, v{t + 1}')
                e.i(f'v_and_b32 v{n[1]}, 0xffff0000, v{t + 1}')
                e.i(f'v_lshlrev_b32 v{n[2]}, 16, v{t + 2}')
                e.i(f'v_and_b32 v{n[3]}, 0xffff0000, v{t + 2}')
                for r in range(4):
                    e.i(f'v_mul_f32 v{n[r]}, v{n[r]}, v{t}')
                e.i(f'v_cvt_pk_bf16_f32 v{OF + 2 * hh}, v{n[0]}, v{n[1]}')
                e.i(f'v_cvt_pk_bf16_f32 v{OF + 2 * hh + 1}, v{n[2]}, v{n[3]}')
            for nt in range(4):
                c = '0' if hp == 0 else ar(accs(mt, nt), 4)
                e.i(f'v_mfma_f32_16x16x32_bf16 {ar(accs(mt, nt), 4)}, {vr(WOF + 4 * nt, 4)}, {vr(OF, 4)}, {c}')

    for i in range(14):
        if i + 2 < 14:
            dload(i + 2)
        buf = FB + (i % 3) * 32
        for mt in range(4):
            for nt in range(4):
                c = '0' if i == 0 else ar(accf(mt, nt), 4)
                e.i(f'v_mfma_f32_16x16x32_bf16 {ar(accf(mt, nt), 4)}, {vr(buf + 4 * nt, 4)}, {vr(buf + 16 + 4 * mt, 4)}, {c}')

    e.i(f's_lshl_b32 s{S_T0}, s{S_WAVE}, 15')
    e.i(f'v_add_u32 v{V_REDW}, s{S_T0}, v{V_LANE16}')
    e.i(f's_lshl_b32 s{S_T1}, s{S_WAVE}, 12')
    e.i(f'v_add_u32 v{V_REDR}, s{S_T1}, v{V_LANE16}')
    lblw = {}
    for mt in range(4):
        e.i(f's_cmp_eq_u32 s{S_WAVE}, {mt}')
        e.i(f's_cbranch_scc1 K2_WSKIP{mt}')
        for a_i, base in ((0, accf), (1, accs)):
            for nt in range(4):
                off = (a_i * 16 + mt * 4 + nt) * 1024
                e.i(f'ds_write_b128 v{V_REDW}, {ar(base(mt, nt), 4)} offset:{off}')
        e.label(f'K2_WSKIP{mt}')
    e.barrier()
    R = TMP
    for mt in range(4):
        e.i(f's_cmp_lg_u32 s{S_WAVE}, {mt}')
        e.i(f's_cbranch_scc1 K2_OWN{mt}')
        for a_i, base in ((0, accf), (1, accs)):
            for nt in range(4):
                for r in range(4):
                    e.i(f'v_accvgpr_read_b32 v{R + (a_i * 4 + nt) * 4 + r}, a{base(mt, nt) + r}')
        e.label(f'K2_OWN{mt}')
    P = FB
    for k in range(1, 4):
        e.i(f's_add_u32 s{S_T0}, s{S_WAVE}, {k}')
        e.i(f's_and_b32 s{S_T0}, s{S_T0}, 3')
        e.i(f's_lshl_b32 s{S_T0}, s{S_T0}, 15')
        e.i(f'v_add_u32 v{V_C}, s{S_T0}, v{V_REDR}')
        for a_i in range(2):
            for nt in range(4):
                e.i(f'ds_read_b128 {vr(P + (a_i * 4 + nt) * 4, 4)}, v{V_C} offset:{(a_i * 16 + nt) * 1024}')
        for j in range(32):
            e.i(f'v_add_f32 v{R + j}, v{R + j}, v{P + j}')

    e.i('v_and_b32 v7, 63, v0')
    e.i(f'v_and_b32 v{V_XOFF}, 15, v7')
    e.i(f'v_lshlrev_b32 v{V_XOFF}, 10, v{V_XOFF}')
    e.i(f'v_lshrrev_b32 v7, 4, v7')
    e.i(f'v_lshl_add_u32 v{V_XOFF}, v7, 3, v{V_XOFF}')
    e.i(f's_lshl_b32 s{S_XO}, s{S_RB}, 16')
    e.i(f's_lshl_b32 s{S_T0}, s{S_WAVE}, 14')
    e.i(f's_add_u32 s{S_XO}, s{S_XO}, s{S_T0}')
    e.i(f's_lshl_b32 s{S_T0}, s{S_CB}, 7')
    e.i(f's_add_u32 s{S_XO}, s{S_XO}, s{S_T0}')
    XB = FB + 32
    for nt in range(4):
        e.i(f'buffer_load_dwordx2 {vr(XB + 2 * nt, 2)}, v{V_XOFF}, s[60:63], s{S_XO} offen offset:{nt * 32}')
    T = FB + 48
    for nt in range(4):
        f = [R + nt * 4 + r for r in range(4)]
        sv = [R + 16 + nt * 4 + r for r in range(4)]
        e.i(f'v_cvt_pk_bf16_f32 v{T}, v{f[0]}, v{f[1]}')
        e.i(f'v_cvt_pk_bf16_f32 v{T + 1}, v{f[2]}, v{f[3]}')
        e.i(f'v_lshlrev_b32 v{f[0]}, 16, v{T}')
        e.i(f'v_and_b32 v{f[1]}, 0xffff0000, v{T}')
        e.i(f'v_lshlrev_b32 v{f[2]}, 16, v{T + 1}')
        e.i(f'v_and_b32 v{f[3]}, 0xffff0000, v{T + 1}')
        G = [T + 4 + r for r in range(4)]
        for r in range(4):
            e.i(f'v_mul_f32 v{G[r]}, {hx(f32bits(-LOG2E))}, v{f[r]}')
        for r in range(4):
            e.i(f'v_exp_f32 v{G[r]}, v{G[r]}')
        for r in range(4):
            e.i(f'v_add_f32 v{G[r]}, 1.0, v{G[r]}')
        for r in range(4):
            e.i(f'v_rcp_f32 v{G[r]}, v{G[r]}')
        for r in range(4):
            e.i(f'v_mul_f32 v{G[r]}, v{f[r]}, v{G[r]}')
        e.i(f'v_cvt_pk_bf16_f32 v{T}, v{G[0]}, v{G[1]}')
        e.i(f'v_cvt_pk_bf16_f32 v{T + 1}, v{G[2]}, v{G[3]}')
        e.i(f'v_lshlrev_b32 v{G[0]}, 16, v{T}')
        e.i(f'v_and_b32 v{G[1]}, 0xffff0000, v{T}')
        e.i(f'v_lshlrev_b32 v{G[2]}, 16, v{T + 1}')
        e.i(f'v_and_b32 v{G[3]}, 0xffff0000, v{T + 1}')
        e.i(f'v_cvt_pk_bf16_f32 v{T}, v{sv[0]}, v{sv[1]}')
        e.i(f'v_cvt_pk_bf16_f32 v{T + 1}, v{sv[2]}, v{sv[3]}')
        e.i(f'v_lshlrev_b32 v{sv[0]}, 16, v{T}')
        e.i(f'v_and_b32 v{sv[1]}, 0xffff0000, v{T}')
        e.i(f'v_lshlrev_b32 v{sv[2]}, 16, v{T + 1}')
        e.i(f'v_and_b32 v{sv[3]}, 0xffff0000, v{T + 1}')
        for r in range(4):
            e.i(f'v_mul_f32 v{G[r]}, v{sv[r]}, v{G[r]}')
        e.i(f'v_cvt_pk_bf16_f32 v{T}, v{G[0]}, v{G[1]}')
        e.i(f'v_cvt_pk_bf16_f32 v{T + 1}, v{G[2]}, v{G[3]}')
        e.i(f'v_lshlrev_b32 v{G[0]}, 16, v{T}')
        e.i(f'v_and_b32 v{G[1]}, 0xffff0000, v{T}')
        e.i(f'v_lshlrev_b32 v{G[2]}, 16, v{T + 1}')
        e.i(f'v_and_b32 v{G[3]}, 0xffff0000, v{T + 1}')
        xb = XB + 2 * nt
        X = [T + 8 + r for r in range(4)]
        e.i(f'v_lshlrev_b32 v{X[0]}, 16, v{xb}')
        e.i(f'v_and_b32 v{X[1]}, 0xffff0000, v{xb}')
        e.i(f'v_lshlrev_b32 v{X[2]}, 16, v{xb + 1}')
        e.i(f'v_and_b32 v{X[3]}, 0xffff0000, v{xb + 1}')
        for r in range(4):
            e.i(f'v_add_f32 v{G[r]}, v{X[r]}, v{G[r]}')
        e.i(f'v_cvt_pk_bf16_f32 v{T + 12 + 2 * (nt & 1)}, v{G[0]}, v{G[1]}')
        e.i(f'v_cvt_pk_bf16_f32 v{T + 13 + 2 * (nt & 1)}, v{G[2]}, v{G[3]}')
        e.i(f'buffer_store_dwordx2 {vr(T + 12 + 2 * (nt & 1), 2)}, v{V_XOFF}, s[64:67], s{S_XO} offen offset:{nt * 32}')
    e.label('K2_END')
    e.i('s_endpgm')
```

```python
import sys, os, struct
sys.path.insert(0, os.path.dirname(os.path.abspath(__file__)))
from asmgen import Emitter

S, D, F = 2048, 512, 1792
NH = 32

XN = 0x0000000
PW1 = 0x0200000
PWD = 0x0700000
PWO = 0x0900000
PQ = 0x0A00000
HH = 0x0C00000
KV = 0x1300000
WS_SIZE = 0x1400000

K0_NAME = 'recurrent_scan__linear_attn_block__geglu_ffn__prompt_kernel'
K1_NAME = 'k1_gemm_kernel'
K2_NAME = 'k2_gemm_kernel'


def f32bits(x):
    return struct.unpack('<I', struct.pack('<f', x))[0]


def hx(x):
    return f'0x{x & 0xffffffff:x}'


LOG2E = 1.4426950408889634
SQRT2PI = 0.7978845608028654


def kernel_header(e, name):
    e.raw('.text')
    e.raw(f'.globl {name}')
    e.raw('.p2align 8')
    e.raw(f'.type {name},@function')
    e.raw(f'{name}:')


def kernel_desc(name, vgprs, sgprs, accum_offset):
    assert accum_offset % 4 == 0
    return f'''.amdhsa_kernel {name}
  .amdhsa_next_free_vgpr {vgprs}
  .amdhsa_next_free_sgpr {sgprs}
  .amdhsa_accum_offset {accum_offset}
  .amdhsa_group_segment_fixed_size 0
  .amdhsa_kernarg_size 80
  .amdhsa_user_sgpr_count 2
  .amdhsa_user_sgpr_kernarg_segment_ptr 1
  .amdhsa_system_sgpr_workgroup_id_x 1
.end_amdhsa_kernel
'''


def load_ptrs(e):
    e.raw('    s_load_dwordx8 s[8:15], s[0:1], 0')
    e.raw('    s_load_dwordx8 s[16:23], s[0:1], 32')
    e.raw('    s_load_dwordx4 s[24:27], s[0:1], 64')
    e.raw('    s_waitcnt lgkmcnt(0)')
    e.t += 4


def make_srd(e, d, lo, nbytes):
    e.i(f's_mov_b32 s{d}, s{lo}')
    e.i(f's_and_b32 s{d + 1}, s{lo + 1}, 0xffff')
    e.i(f's_mov_b32 s{d + 2}, {hx(nbytes)}')
    e.i(f's_mov_b32 s{d + 3}, 0x00020000')


def round_bf16(e, dst, src, tmp):
    e.i(f'v_cvt_pk_bf16_f32 v{tmp}, v{src}, v{src}')
    e.i(f'v_lshlrev_b32 v{dst}, 16, v{tmp}')


def round_bf16_pair(e, d0, d1, s0, s1, tmp):
    e.i(f'v_cvt_pk_bf16_f32 v{tmp}, v{s0}, v{s1}')
    e.i(f'v_lshlrev_b32 v{d0}, 16, v{tmp}')
    e.i(f'v_and_b32 v{d1}, 0xffff0000, v{tmp}')


K0_LN = 128
K0_SHUF = [
    ('wqkv', 36, 3072, 16, PW1, 0, 24, False),
    ('gate', 44, 3584, 16, PW1, 96, 28, False),
    ('up', 48, 3584, 16, PW1, 208, 28, False),
    ('down', 52, 1024, 56, PWD, 0, 8, False),
    ('wo', 40, 1024, 16, PWO, 0, 8, True),
]
K0_LDS_WAVE = 4608
K0_LDS = 4 * K0_LDS_WAVE


def k0_layout():
    wg = K0_LN
    out = []
    for spec in K0_SHUF:
        ntask = spec[3] * spec[6]
        assert ntask % 4 == 0
        out.append((wg, wg + ntask // 4, spec))
        wg += ntask // 4
    zero_wg = wg
    return out, zero_wg, wg + 1


def gen_k0(e):
    e.reset_state()
    shuf, zero_wg, total = k0_layout()
    kernel_header(e, K0_NAME)
    e.i(f's_cmp_ge_u32 s2, {total}')
    e.i('s_cbranch_scc1 K0_END')
    load_ptrs(e)
    make_srd(e, 28, 26, WS_SIZE)
    make_srd(e, 32, 8, S * D * 2)
    make_srd(e, 36, 10, D * 3 * D * 2)
    make_srd(e, 40, 12, D * D * 2)
    make_srd(e, 44, 16, D * F * 2)
    make_srd(e, 48, 18, D * F * 2)
    make_srd(e, 52, 20, F * D * 2)
    e.i(f's_cmp_lt_u32 s2, {K0_LN}')
    e.i('s_cbranch_scc1 K0_LNPATH')
    for k, (lo, hi, spec) in enumerate(shuf):
        e.i(f's_cmp_lt_u32 s2, {hi}')
        e.i(f's_cbranch_scc1 K0_SHUF{k}')
    e.i('v_mov_b32 v4, 0')
    e.i('v_mov_b32 v5, 0')
    e.i('v_mov_b32 v6, 0')
    e.i('v_mov_b32 v7, 0')
    e.i('v_lshlrev_b32 v1, 4, v0')
    e.i(f's_mov_b32 s60, {hx(KV)}')
    for r in range(16):
        e.i(f'buffer_store_dwordx4 v[4:7], v1, s[28:31], s60 offen')
        if r != 15:
            e.i('s_add_u32 s60, s60, 4096')
    e.i('s_branch K0_END')

    e.label('K0_LNPATH')
    e.i('s_lshl_b32 s60, s2, 14')
    e.i('v_lshrrev_b32 v1, 4, v0')
    e.i('v_and_b32 v2, 15, v0')
    e.i('v_lshlrev_b32 v3, 10, v1')
    e.i('v_lshl_add_u32 v3, v2, 4, v3')
    for i in range(4):
        e.i(f'buffer_load_dwordx4 v[{4 + 4 * i}:{7 + 4 * i}], v3, s[32:35], s60 offen offset:{256 * i}')
    for k in range(16):
        e.i(f'v_lshlrev_b32 v{20 + 2 * k}, 16, v{4 + k}')
        e.i(f'v_and_b32 v{21 + 2 * k}, 0xffff0000, v{4 + k}')
    e.i('v_add_f32 v52, v20, v21')
    e.i('v_add_f32 v53, v22, v23')
    for k in range(2, 16):
        e.i(f'v_add_f32 v52, v52, v{20 + 2 * k}')
        e.i(f'v_add_f32 v53, v53, v{21 + 2 * k}')
    e.i('v_add_f32 v52, v52, v53')

    def row_reduce(reg, tmp):
        for sh in (8, 4, 2, 1):
            e.i(f'v_add_f32_dpp v{tmp}, v{reg}, v{reg} row_ror:{sh} row_mask:0xf bank_mask:0xf')
            e.i(f'v_mov_b32 v{reg}, v{tmp}')

    row_reduce(52, 54)
    e.i(f'v_mul_f32 v52, {hx(f32bits(1.0 / 512))}, v52')
    e.i('v_mov_b32 v55, 0')
    e.i('v_mov_b32 v56, 0')
    for k in range(16):
        e.i(f'v_sub_f32 v57, v{20 + 2 * k}, v52')
        e.i(f'v_sub_f32 v58, v{21 + 2 * k}, v52')
        e.i('v_fmac_f32 v55, v57, v57')
        e.i('v_fmac_f32 v56, v58, v58')
    e.i('v_add_f32 v55, v55, v56')
    row_reduce(55, 54)
    e.i(f'v_mul_f32 v55, {hx(f32bits(1.0 / 512))}, v55')
    round_bf16(e, 52, 52, 54)
    round_bf16(e, 55, 55, 54)
    e.i(f'v_add_f32 v55, {hx(f32bits(1e-5))}, v55')
    round_bf16(e, 55, 55, 54)
    e.i('v_sqrt_f32 v55, v55')
    round_bf16(e, 55, 55, 54)
    e.i('v_rcp_f32 v55, v55')
    e.i('v_lshrrev_b32 v56, 2, v2')
    e.i('v_lshlrev_b32 v56, 10, v56')
    e.i('v_and_b32 v57, 3, v2')
    e.i('v_lshl_add_u32 v56, v57, 8, v56')
    e.i('v_lshl_add_u32 v56, v1, 4, v56')
    for i in range(4):
        for q in range(4):
            k = i * 4 + q
            a, b = 20 + 2 * k, 21 + 2 * k
            e.i(f'v_sub_f32 v{a}, v{a}, v52')
            e.i(f'v_sub_f32 v{b}, v{b}, v52')
            round_bf16_pair(e, a, b, a, b, 58)
            e.i(f'v_mul_f32 v{a}, v{a}, v55')
            e.i(f'v_mul_f32 v{b}, v{b}, v55')
            e.i(f'v_cvt_pk_bf16_f32 v{4 + k}, v{a}, v{b}')
        if i:
            e.i(f's_add_u32 s61, s60, {4096 * i}')
        soff = 's60' if i == 0 else 's61'
        e.i(f'buffer_store_dwordx4 v[{4 + 4 * i}:{7 + 4 * i}], v56, s[28:31], {soff} offen')
    e.i('s_branch K0_END')

    for k, (lo, hi, spec) in enumerate(shuf):
        name, srd, pitch, nS, region, tile_base, ntg, inter = spec
        e.label(f'K0_SHUF{k}')
        e.i('v_lshrrev_b32 v1, 6, v0')
        e.i('v_readfirstlane_b32 s60, v1')
        e.i(f's_sub_u32 s61, s2, {lo}')
        e.i('s_lshl_b32 s61, s61, 2')
        e.i('s_add_u32 s61, s61, s60')
        if nS == 16:
            e.i('s_and_b32 s62, s61, 15')
            e.i('s_lshr_b32 s63, s61, 4')
        else:
            e.i('s_and_b32 s63, s61, 7')
            e.i('s_lshr_b32 s62, s61, 3')
        e.i(f's_mul_i32 s64, s62, {32 * pitch}')
        e.i('s_lshl_b32 s65, s63, 7')
        e.i('s_add_u32 s64, s64, s65')
        e.i('v_and_b32 v2, 63, v0')
        e.i('v_lshrrev_b32 v3, 3, v2')
        e.i(f'v_mul_u32_u24 v4, {pitch}, v3')
        e.i('v_and_b32 v5, 7, v2')
        e.i('v_lshl_add_u32 v4, v5, 4, v4')
        for i in range(4):
            if i:
                e.i(f's_add_u32 s64, s64, {8 * pitch}')
            e.i(f'buffer_load_dwordx4 v[{8 + 4 * i}:{11 + 4 * i}], v4, s[{srd}:{srd + 3}], s64 offen')
        e.i(f's_mul_i32 s66, s60, {K0_LDS_WAVE}')
        e.i('v_mul_u32_u24 v6, 144, v3')
        e.i('v_lshl_add_u32 v6, v5, 4, v6')
        e.i('v_add_u32 v6, s66, v6')
        e.i('v_lshrrev_b32 v7, 4, v2')
        e.i('v_bfe_u32 v24, v2, 2, 2')
        e.i(f'v_lshlrev_b32 v7, {3 if not inter else 2}, v7')
        e.i('v_add_u32 v7, v7, v24')
        e.i('v_mul_u32_u24 v7, 144, v7')
        e.i('v_and_b32 v24, 3, v2')
        e.i('v_lshl_add_u32 v7, v24, 3, v7')
        e.i('v_add_u32 v7, s66, v7')
        for i in range(4):
            e.i(f'ds_write_b128 v6, v[{8 + 4 * i}:{11 + 4 * i}] offset:{i * 8 * 144}')
        off2 = (4 if not inter else 16) * 144
        e.i(f's_mul_i32 s67, s63, {4 * nS * 1024}')
        e.i('s_lshl_b32 s68, s62, 10')
        e.i('s_add_u32 s67, s67, s68')
        e.i(f's_add_u32 s67, s67, {hx(region + tile_base * nS * 1024)}')
        e.i('v_lshlrev_b32 v25, 4, v2')
        for q in range(4):
            e.i(f'ds_read_b64_tr_b16 v[{28 + 4 * q}:{29 + 4 * q}], v7 offset:{q * 32}')
            e.i(f'ds_read_b64_tr_b16 v[{30 + 4 * q}:{31 + 4 * q}], v7 offset:{q * 32 + off2}')
        for q in range(4):
            if q:
                e.i(f's_add_u32 s67, s67, {nS * 1024}')
            e.i(f'buffer_store_dwordx4 v[{28 + 4 * q}:{31 + 4 * q}], v25, s[28:31], s67 offen')
        e.i('s_branch K0_END')
    e.label('K0_END')
    e.i('s_endpgm')
    return total


def build(path, parts=('k0', 'k1', 'k2')):
    launches = []
    body = Emitter()
    descs = []
    total0 = gen_k0(body)
    launches.append(f'; @launch kernel={K0_NAME} grid=({total0},1,1) block=(256,1,1) lds={K0_LDS}')
    descs.append(kernel_desc(K0_NAME, 64, 96, 64))
    if 'k1' in parts:
        import gen_k1
        gen_k1.gen_k1(body)
        launches.append(f'; @launch kernel={K1_NAME} grid=(256,1,1) block=(512,1,1) lds={gen_k1.K1_LDS}')
        descs.append(kernel_desc(K1_NAME, gen_k1.K1_VGPRS, gen_k1.K1_SGPRS, gen_k1.K1_VGPRS))
    if 'k2' in parts:
        import gen_k2
        gen_k2.gen_k2(body)
        launches.append(f'; @launch kernel={K2_NAME} grid=(256,1,1) block=(256,1,1) lds={gen_k2.K2_LDS}')
        descs.append(kernel_desc(K2_NAME, gen_k2.K2_VGPRS + gen_k2.K2_AGPRS, gen_k2.K2_SGPRS, gen_k2.K2_VGPRS))
    head = ['; generated by gen/gen.py -- do not edit by hand'] + launches
    out = '\n'.join(head) + '\n.amdgcn_target "amdgcn-amd-amdhsa--gfx950"\n' + body.text()
    out += '.section .rodata,"a"\n.p2align 6\n' + '\n.p2align 6\n'.join(descs)
    open(path, 'w').write(out)
    print('wrote', path, len(out), 'bytes')


if __name__ == '__main__':
    path = sys.argv[1] if len(sys.argv) > 1 else 'k0.s'
    parts = tuple(sys.argv[2].split(',')) if len(sys.argv) > 2 else ('k0', 'k1', 'k2')
    build(path, parts)
```

```python
import re

TRANS = ('v_exp_f32', 'v_log_f32', 'v_rcp_f32', 'v_rsq_f32', 'v_sqrt_f32', 'v_sin_f32', 'v_cos_f32')

_reg1 = re.compile(r'^([vas])(\d+)$')
_regN = re.compile(r'^([vas])\[(\d+):(\d+)\]$')


def parse_reg(tok):
    tok = tok.strip()
    m = _reg1.match(tok)
    if m:
        return [(m.group(1), int(m.group(2)))]
    m = _regN.match(tok)
    if m:
        return [(m.group(1), i) for i in range(int(m.group(2)), int(m.group(3)) + 1)]
    if tok in ('vcc',):
        return [('s', 'vcc')]
    if tok in ('m0',):
        return [('s', 'm0')]
    if tok in ('exec',):
        return [('s', 'exec')]
    if tok.startswith('-') and len(tok) > 1 and tok[1] in 'va':
        return parse_reg(tok[1:])
    m = re.match(r'^\|(.*)\|$', tok)
    if m:
        return parse_reg(m.group(1))
    m = re.match(r'^abs\((.*)\)$', tok)
    if m:
        return parse_reg(m.group(1))
    return []


class Emitter:
    def __init__(self):
        self.lines = []
        self.reset_state()

    def reset_state(self):
        self.t = 0
        self.valu_w = {}
        self.trans_w = {}
        self.mfma_w = {}
        self.mfma_c_r = {}
        self.valu_sw = {}
        self.salu_m0 = -100
        self.store_data = {}
        self.vm = []
        self.lg = []
        self.n_instr = 0

    def raw(self, s):
        self.lines.append(s)

    def comment(self, s):
        self.lines.append('    ; ' + s)

    def label(self, name):
        self.lines.append(name + ':')
        now = self.t
        for d in (self.valu_w, self.trans_w, self.mfma_c_r, self.valu_sw, self.store_data):
            for k in d:
                d[k] = now
        for k in self.mfma_w:
            self.mfma_w[k] = (now, -1, 0)
        self.salu_m0 = now

    def nop(self, n):
        while n > 0:
            k = min(n, 16)
            self.lines.append(f'    s_nop {k - 1}')
            self.t += k
            n -= k

    def _wait_queue(self, q, idx, name):
        n = len(q) - idx - 1
        self.lines.append(f'    s_waitcnt {name}({n})')
        self.t += 1
        del q[:idx + 1]

    def wait_vm_tag(self, tag):
        idx = max((i for i, o in enumerate(self.vm) if o['tag'] == tag), default=-1)
        if idx >= 0:
            self._wait_queue(self.vm, idx, 'vmcnt')

    def wait_vm_all(self):
        if self.vm:
            self.lines.append('    s_waitcnt vmcnt(0)')
            self.t += 1
            self.vm = []

    def wait_lgkm_all(self):
        if self.lg:
            self.lines.append('    s_waitcnt lgkmcnt(0)')
            self.t += 1
            self.lg = []

    def stamp(self, name):
        if not getattr(self, 'stamps_on', False):
            return
        k = len(self.stamp_names)
        assert k < 12
        self.stamp_names.append(name)
        op = 's_memrealtime' if name.startswith('rt_') else 's_memtime'
        self.lines.append(f'    {op} s[{self.stamp_base + 2 * k}:{self.stamp_base + 2 * k + 1}]')
        self.t += 1

    def barrier(self):
        self.wait_lgkm_all()
        self.lines.append('    s_barrier')
        self.t += 1

    def _touch(self, regs):
        rs = set(regs)
        idx = -1
        for i, o in enumerate(self.vm):
            if o['regs'] & rs:
                idx = i
        if idx >= 0:
            self._wait_queue(self.vm, idx, 'vmcnt')
        idx = -1
        for i, o in enumerate(self.lg):
            if o['regs'] & rs:
                idx = i
        if idx >= 0:
            self._wait_queue(self.lg, idx, 'lgkmcnt')

    store_mod = ''

    def i(self, text, tag=None):
        text = text.strip()
        if self.store_mod and text.startswith('buffer_store') and self.store_mod not in text:
            text = text + ' ' + self.store_mod
        sp = text.split(None, 1)
        mn = sp[0]
        rest = sp[1] if len(sp) > 1 else ''
        ops = [o.strip() for o in rest.split(',')] if rest else []
        mods = ''
        if ops:
            last = ops[-1].split(None, 1)
            ops[-1] = last[0]
            mods = last[1] if len(last) > 1 else ''
        need = 0
        T = self.t

        def req(tp, ws):
            nonlocal need
            if tp is None:
                return
            k = ws - (T - tp - 1)
            if k > need:
                need = k

        dst, src = [], []
        kind = 'other'
        if mn.startswith('v_mfma'):
            kind = 'mfma'
            d = parse_reg(ops[0]); a = parse_reg(ops[1]); b = parse_reg(ops[2]); c = parse_reg(ops[3])
            self._touch(d + a + b + c)
            for r in a + b:
                req(self.valu_w.get(r), 2)
                if r in self.mfma_w:
                    req(self.mfma_w[r][0], 8)
            for r in c:
                req(self.valu_w.get(r), 2)
                if r in self.mfma_w:
                    tp, first, n = self.mfma_w[r]
                    same = (c[0] == first and len(c) == n)
                    req(tp, 0 if same else 6)
            for r in d:
                if r in self.mfma_w and r not in c:
                    req(self.mfma_w[r][0], 8)
            self._finish(text, need)
            for r in d:
                self.mfma_w[r] = (self.t - 1, d[0], len(d))
                self.valu_w.pop(r, None)
            for r in c:
                self.mfma_c_r[r] = self.t - 1
            return

        if mn.startswith('v_'):
            kind = 'valu'
            if mn.startswith('v_cmp'):
                dst = parse_reg(ops[0]); src = [r for o in ops[1:] for r in parse_reg(o)]
            elif mn in ('v_readfirstlane_b32', 'v_readlane_b32'):
                dst = parse_reg(ops[0]); src = [r for o in ops[1:] for r in parse_reg(o)]
            else:
                dst = parse_reg(ops[0]); src = [r for o in ops[1:] for r in parse_reg(o)]
                if mn.startswith(('v_fmac', 'v_mac', 'v_pk_fmac')):
                    src = src + dst
                if mn.startswith(('v_add_co', 'v_sub_co', 'v_addc_co', 'v_subb_co')):
                    dst = dst + parse_reg(ops[1])
                    src = [r for o in ops[2:] for r in parse_reg(o)]
            if mn.startswith('v_cndmask') and len(ops) == 3:
                src = src + [('s', 'vcc')]
            is_dpp = '_dpp' in mn or 'row_' in mods or 'quad_perm' in mods
            self._touch(dst + src)
            for r in src:
                if r[0] in 'va':
                    if r in self.mfma_w:
                        req(self.mfma_w[r][0], 8)
                    req(self.trans_w.get(r), 1)
                    if mn in ('v_readfirstlane_b32', 'v_readlane_b32'):
                        req(self.valu_w.get(r), 1)
                    if is_dpp:
                        req(self.valu_w.get(r), 2)
                else:
                    req(self.valu_sw.get(r), 2)
            for r in dst:
                if r[0] in 'va':
                    if r in self.mfma_w:
                        req(self.mfma_w[r][0], 8)
                    req(self.mfma_c_r.get(r), 3)
                    req(self.store_data.get(r), 2)
            self._finish(text, need)
            for r in dst:
                if r[0] in 'va':
                    self.valu_w[r] = self.t - 1
                    self.mfma_w.pop(r, None)
                    if mn in TRANS:
                        self.trans_w[r] = self.t - 1
                    else:
                        self.trans_w.pop(r, None)
                else:
                    self.valu_sw[r] = self.t - 1
            return

        if mn.startswith('buffer_') or mn.startswith('ds_'):
            is_ds = mn.startswith('ds_')
            lds_dma = (not is_ds) and re.search(r'\blds\b', mods) is not None
            sregs = []
            if is_ds:
                if mn.startswith('ds_read'):
                    dst = parse_reg(ops[0]); src = parse_reg(ops[1])
                elif mn.startswith('ds_write'):
                    src = [r for o in ops for r in parse_reg(o)]
                elif mn.startswith(('ds_bpermute', 'ds_permute', 'ds_swizzle')):
                    dst = parse_reg(ops[0]); src = [r for o in ops[1:] for r in parse_reg(o)]
                else:
                    raise ValueError('unhandled ds op ' + text)
            else:
                if mn.startswith('buffer_load'):
                    if lds_dma:
                        src = parse_reg(ops[0]); sregs = parse_reg(ops[1]) + parse_reg(ops[2])
                    else:
                        dst = parse_reg(ops[0]); src = parse_reg(ops[1]); sregs = parse_reg(ops[2]) + parse_reg(ops[3])
                        if '_d16' in mn:
                            src = src + dst
                elif mn.startswith(('buffer_store', 'buffer_atomic')):
                    src = parse_reg(ops[0]) + parse_reg(ops[1]); sregs = parse_reg(ops[2]) + parse_reg(ops[3])
                else:
                    raise ValueError('unhandled buffer op ' + text)
            self._touch(dst + src)
            for r in src + dst:
                if r in self.mfma_w:
                    req(self.mfma_w[r][0], 8)
            for r in dst:
                req(self.store_data.get(r), 1)
            for r in sregs:
                req(self.valu_sw.get(r), 5)
            if lds_dma:
                req(self.salu_m0, 1)
            self._finish(text, need)
            q = self.lg if is_ds else self.vm
            q.append(dict(regs=set(dst), tag=tag))
            lim = 15 if is_ds else 63
            if len(q) > lim:
                self._wait_queue(q, len(q) - lim - 1, 'lgkmcnt' if is_ds else 'vmcnt')
            for r in dst:
                self.mfma_w.pop(r, None)
                self.valu_w.pop(r, None)
                self.trans_w.pop(r, None)
            if (not is_ds) and mn.startswith(('buffer_store_dwordx3', 'buffer_store_dwordx4')):
                for r in parse_reg(ops[0]):
                    self.store_data[r] = self.t - 1
            return

        if mn.startswith('s_'):
            if mn == 's_waitcnt':
                m = re.search(r'vmcnt\((\d+)\)', text)
                if m:
                    n = int(m.group(1))
                    if len(self.vm) > n:
                        del self.vm[:len(self.vm) - n]
                m = re.search(r'lgkmcnt\((\d+)\)', text)
                if m:
                    n = int(m.group(1))
                    if len(self.lg) > n:
                        del self.lg[:len(self.lg) - n]
                self._finish(text, 0)
                return
            if mn == 's_nop':
                self.lines.append('    ' + text)
                self.t += int(ops[0], 0) + 1
                return
            if mn == 's_barrier':
                assert not self.lg, 's_barrier with LDS ops outstanding'
                self._finish(text, 0)
                return
            no_dst = mn.startswith(('s_cmp', 's_branch', 's_cbranch', 's_endpgm', 's_setprio', 's_sleep', 's_bitcmp'))
            if no_dst:
                src = [r for o in ops for r in parse_reg(o)]
            else:
                dst = parse_reg(ops[0]); src = [r for o in ops[1:] for r in parse_reg(o)]
            for r in src:
                req(self.valu_sw.get(r), 1)
            self._finish(text, need)
            for r in dst:
                self.valu_sw.pop(r, None)
                if r == ('s', 'm0'):
                    self.salu_m0 = self.t - 1
            return

        raise ValueError('unhandled instruction: ' + text)

    def _finish(self, text, need):
        if need > 0:
            self.nop(need)
        self.lines.append('    ' + text)
        self.t += 1
        self.n_instr += 1

    def text(self):
        return '\n'.join(self.lines) + '\n'
```

```python
from gen import *

K1_STAGE = 40960
K1_RED = 2 * K1_STAGE
K1_LDS = K1_RED + 16 * 1024

V_LANE16, V_AOFF0, V_AOFF1, V_LRD0, V_LRD1 = 1, 2, 3, 4, 5
V_HLANE, V_LANE8, V_LANE4, V_REDW, V_REDR = 6, 7, 8, 9, 10
V_ONES = 12
ACC = 16
AFR = 96
BFR = 120
TMP = 160
V_C1, V_C2 = 204, 205
K1_VGPRS = 208

S_RB, S_CG, S_WAVE = 32, 33, 34
S_TB = 36
S_TBSEL = 46
S_LDSW = 51
S_4K = 52
S_T0, S_T1, S_T2 = 55, 56, 57
S_HB, S_PQB, S_KVB = 58, 59, 60
S_JB, S_QB = 61, 62
S_CMP = 64
K1_SGPRS = 80

MIMIC = os.environ.get('K1_MIMIC', '1') == '1'
GELU_C1 = -2.0 * SQRT2PI * LOG2E
GELU_C2 = GELU_C1 * 0.044715

VARIANTS = {}
VARIANTS['Q1K1F3'] = dict(
    cg=(0, 16),
    slots=[('Q', 0, 2), ('Q', 1, 2), ('K', 32, 1), ('V', 64, 1)] +
          [s for u in range(3) for s in (('G', 96 + u, 3), ('U', 208 + u, 3))],
    units=[('K', (2, 3), (0, 1)), ('Q', 0, (0, 2)), ('Q', 1, (1, 2))] + [('F', (4 + 2 * u, 5 + 2 * u), (u, 3)) for u in range(3)],
)
VARIANTS['K1F4'] = dict(
    cg=(16, 32),
    slots=[('K', 32, 1), ('V', 64, 1)] + [s for u in range(4) for s in (('G', 96 - 16 + u, 4), ('U', 208 - 16 + u, 4))],
    units=[('K', (0, 1), (0, 1))] + [('F', (2 + 2 * u, 3 + 2 * u), (u - 16, 4)) for u in range(4)],
)


def acc(nt, mt):
    return ACC + (nt * 2 + mt) * 4


def vr(b, n):
    return f'v[{b}:{b + n - 1}]'


def k1_prologue(e):
    load_ptrs(e)
    make_srd(e, 28, 26, WS_SIZE)
    if os.environ.get('K1_MAP', '0') == '0':
        e.i(f's_lshr_b32 s{S_RB}, s2, 5')
        e.i(f's_and_b32 s{S_CG}, s2, 31')
    else:
        e.i(f's_lshr_b32 s{S_T0}, s2, 6')
        e.i(f's_lshl_b32 s{S_T0}, s{S_T0}, 1')
        e.i(f's_bfe_u32 s{S_T1}, s2, 0x10002')
        e.i(f's_or_b32 s{S_RB}, s{S_T0}, s{S_T1}')
        e.i(f's_bfe_u32 s{S_T0}, s2, 0x30003')
        e.i(f's_lshl_b32 s{S_T0}, s{S_T0}, 2')
        e.i(f's_and_b32 s{S_T1}, s2, 3')
        e.i(f's_or_b32 s{S_CG}, s{S_T0}, s{S_T1}')
    e.i('v_lshrrev_b32 v11, 6, v0')
    e.i(f'v_readfirstlane_b32 s{S_WAVE}, v11')
    e.i(f'v_and_b32 v11, 63, v0')
    e.i(f'v_lshlrev_b32 v{V_LANE16}, 4, v11')
    e.i(f's_lshl_b32 s{S_T0}, s{S_RB}, 4')
    e.i(f's_lshl_b32 s{S_T1}, s{S_WAVE}, 1')
    e.i(f's_add_u32 s{S_T0}, s{S_T0}, s{S_T1}')
    e.i(f's_lshl_b32 s{S_T1}, s{S_T0}, 14')
    e.i(f'v_add_u32 v{V_AOFF0}, s{S_T1}, v{V_LANE16}')
    e.i(f'v_add_u32 v{V_AOFF1}, 16384, v{V_AOFF0}')
    e.i(f'v_mov_b32 v{V_LRD0}, v{V_LANE16}')
    e.i(f'v_add_u32 v{V_LRD1}, {K1_STAGE}, v{V_LANE16}')
    e.i(f's_mov_b32 s{S_4K}, 4096')
    e.i(f's_mov_b32 s{S_4K + 1}, 8192')
    e.i(f's_mov_b32 s{S_4K + 2}, 12288')
    e.i(f's_mul_i32 s{S_HB}, s{S_T0}, {112 * 512}')
    e.i(f's_add_u32 s{S_HB}, s{S_HB}, {hx(HH)}')
    e.i(f's_lshl_b32 s{S_PQB}, s{S_T0}, 14')
    e.i(f's_add_u32 s{S_PQB}, s{S_PQB}, {hx(PQ)}')


def k1_tiles(e, V):
    for nt, (kind, a, b) in enumerate(V['slots']):
        if b:
            e.i(f's_mul_i32 s{S_TB + nt}, s{S_CG}, {b * 16384}')
            e.i(f's_add_u32 s{S_TB + nt}, s{S_TB + nt}, {hx(PW1 + a * 16384)}')
        else:
            e.i(f's_mov_b32 s{S_TB + nt}, {hx(PW1 + a * 16384)}')
    e.i(f's_lshr_b32 s{S_T0}, s{S_WAVE}, 1')
    e.i(f's_lshl_b32 s{S_T1}, s{S_T0}, 10')
    e.i(f's_mul_i32 s{S_LDSW}, s{S_T0}, 10240')
    e.i(f's_and_b32 s{S_T2}, s{S_WAVE}, 1')
    for i in range(5):
        e.i(f's_cselect_b32 s{S_TBSEL + i}, s{S_TB + 5 + i}, s{S_TB + i}')
    for i in range(5):
        e.i(f's_add_u32 s{S_TBSEL + i}, s{S_TBSEL + i}, s{S_T1}')
    e.i(f's_mul_i32 s{S_T2}, s{S_T2}, 5120')
    e.i(f's_add_u32 s{S_LDSW}, s{S_LDSW}, s{S_T2}')


def k1_mainloop(e, V):
    orient = ['N' if k in ('K', 'V') else 'T' for (k, a, b) in V['slots']]

    def dma(chunk):
        stage = chunk & 1
        for i in range(5):
            e.i(f's_add_u32 m0, s{S_LDSW}, {stage * K1_STAGE + i * 1024}')
            e.i(f's_add_u32 s{S_T0}, s{S_TBSEL + i}, {chunk * 4096}')
            e.i(f'buffer_load_dwordx4 v{V_LANE16}, s[28:31], s{S_T0} offen lds', tag=f'dma{chunk}')

    def aload(s):
        buf = AFR + (s % 3) * 8
        soff = ['0', f's{S_4K}', f's{S_4K + 1}', f's{S_4K + 2}'][s >> 2]
        for mt in range(2):
            e.i(f'buffer_load_dwordx4 {vr(buf + 4 * mt, 4)}, v{V_AOFF0 + mt}, s[28:31], {soff} offen offset:{(s & 3) * 1024}')

    def bread(chunk, ks, half):
        va = V_LRD0 + (chunk & 1)
        for i in range(5):
            nt = half * 5 + i
            e.i(f'ds_read_b128 {vr(BFR + half * 20 + 4 * i, 4)}, v{va} offset:{(ks * 10 + nt) * 1024}')

    def mfmas(s, half):
        abuf = AFR + (s % 3) * 8
        for i in range(5):
            nt = half * 5 + i
            bf = vr(BFR + half * 20 + 4 * i, 4)
            for mt in range(2):
                af = vr(abuf + 4 * mt, 4)
                d = vr(acc(nt, mt), 4)
                c = '0' if s == 0 else d
                if orient[nt] == 'T':
                    e.i(f'v_mfma_f32_16x16x32_bf16 {d}, {bf}, {af}, {c}')
                else:
                    e.i(f'v_mfma_f32_16x16x32_bf16 {d}, {af}, {bf}, {c}')

    dma(0)
    dma(1)
    aload(0)
    aload(1)
    return dma, aload, bread, mfmas


def k1_run(e, V, hooks):
    dma, aload, bread, mfmas = hooks
    e.wait_vm_tag('dma0')
    e.barrier()
    e.stamp('first_barrier')
    bread(0, 0, 0)
    for c in range(4):
        if 1 <= c <= 2:
            dma(c + 1)
        for ks in range(4):
            s = 4 * c + ks
            if s + 2 < 16:
                aload(s + 2)
            bread(c, ks, 1)
            mfmas(s, 0)
            if ks < 3:
                bread(c, ks + 1, 0)
            mfmas(s, 1)
        e.stamp(f'chunk{c}')
        if c < 3:
            e.wait_vm_tag(f'dma{c + 1}')
            e.barrier()
            bread(c + 1, 0, 0)


def round4(e, src, dst, t0, t1):
    e.i(f'v_cvt_pk_bf16_f32 v{t0}, v{src[0]}, v{src[1]}')
    e.i(f'v_cvt_pk_bf16_f32 v{t1}, v{src[2]}, v{src[3]}')
    e.i(f'v_lshlrev_b32 v{dst[0]}, 16, v{t0}')
    e.i(f'v_and_b32 v{dst[1]}, 0xffff0000, v{t0}')
    e.i(f'v_lshlrev_b32 v{dst[2]}, 16, v{t1}')
    e.i(f'v_and_b32 v{dst[3]}, 0xffff0000, v{t1}')


def phi4(e, x, out, tb):
    A = [tb + r for r in range(4)]
    E = [tb + 4 + r for r in range(4)]
    P = [tb + 8 + r for r in range(4)]
    for r in range(4):
        e.i(f'v_mul_f32 v{E[r]}, {hx(f32bits(LOG2E))}, v{x[r]}')
    for r in range(4):
        e.i(f'v_exp_f32 v{E[r]}, v{E[r]}')
    for r in range(4):
        e.i(f'v_add_f32 v{A[r]}, 1.0, v{x[r]}')
    for r in range(4):
        e.i(f'v_cmp_lt_f32 s[{S_CMP + 2 * r}:{S_CMP + 2 * r + 1}], 0, v{x[r]}')
    for r in range(4):
        e.i(f'v_cvt_pk_bf16_f32 v{P[r]}, v{A[r]}, v{E[r]}')
    for r in range(4):
        e.i(f'v_lshlrev_b32 v{A[r]}, 16, v{P[r]}')
    for r in range(4):
        e.i(f'v_and_b32 v{E[r]}, 0xffff0000, v{P[r]}')
    for r in range(4):
        e.i(f'v_add_f32 v{E[r]}, {hx(f32bits(1e-6))}, v{E[r]}')
    for r in range(4):
        e.i(f'v_cndmask_b32 v{out[r]}, v{E[r]}, v{A[r]}, s[{S_CMP + 2 * r}:{S_CMP + 2 * r + 1}]')


def epi_Q(e, slot, head_ab):
    a, b = head_ab
    for mt in range(2):
        src = [acc(slot, mt) + r for r in range(4)]
        X = [TMP + r for r in range(4)]
        O = [TMP + 4 + r for r in range(4)]
        round4(e, src, X, TMP + 8, TMP + 9)
        phi4(e, X, O, TMP + 10)
        e.i(f'v_cvt_pk_bf16_f32 v{TMP + 22}, v{O[0]}, v{O[1]}')
        e.i(f'v_cvt_pk_bf16_f32 v{TMP + 23}, v{O[2]}, v{O[3]}')
        e.i(f's_add_u32 s{S_T0}, s{S_QB}, {hx(mt * 16384 + a * 512)}')
        e.i(f'buffer_store_dwordx2 {vr(TMP + 22, 2)}, v{V_LANE8}, s[28:31], s{S_T0} offen')


def epi_F(e, slots, j_ab):
    sg, su = slots
    a, b = j_ab
    for mt in range(2):
        g = [acc(sg, mt) + r for r in range(4)]
        u = [acc(su, mt) + r for r in range(4)]
        X = [TMP + r for r in range(4)]
        Y = [TMP + 4 + r for r in range(4)]
        U = [TMP + 8 + r for r in range(4)]
        if MIMIC:
            round4(e, g, X, TMP + 12, TMP + 13)
        else:
            X = g
        for r in range(4):
            e.i(f'v_mul_f32 v{Y[r]}, v{X[r]}, v{X[r]}')
        for r in range(4):
            e.i(f'v_fma_f32 v{Y[r]}, v{Y[r]}, v{V_C2}, v{V_C1}')
        for r in range(4):
            e.i(f'v_mul_f32 v{Y[r]}, v{X[r]}, v{Y[r]}')
        for r in range(4):
            e.i(f'v_exp_f32 v{Y[r]}, v{Y[r]}')
        for r in range(4):
            e.i(f'v_add_f32 v{Y[r]}, 1.0, v{Y[r]}')
        for r in range(4):
            e.i(f'v_rcp_f32 v{Y[r]}, v{Y[r]}')
        for r in range(4):
            e.i(f'v_mul_f32 v{Y[r]}, v{X[r]}, v{Y[r]}')
        if MIMIC:
            round4(e, Y, Y, TMP + 12, TMP + 13)
            round4(e, u, U, TMP + 14, TMP + 15)
        else:
            U = u
        for r in range(4):
            e.i(f'v_mul_f32 v{Y[r]}, v{Y[r]}, v{U[r]}')
        e.i(f'v_cvt_pk_bf16_f32 v{TMP + 16}, v{Y[0]}, v{Y[1]}')
        e.i(f'v_cvt_pk_bf16_f32 v{TMP + 17}, v{Y[2]}, v{Y[3]}')
        e.i(f's_add_u32 s{S_T0}, s{S_JB}, {hx(mt * 112 * 512 + a * 512)}')
        e.i(f'buffer_store_dwordx2 {vr(TMP + 16, 2)}, v{V_HLANE}, s[28:31], s{S_T0} offen')


def epi_K(e, slots, res):
    sk, sv = slots
    PK = [TMP + 24 + r for r in range(8)]
    for mt in range(2):
        src = [acc(sk, mt) + r for r in range(4)]
        X = [TMP + r for r in range(4)]
        round4(e, src, X, TMP + 8, TMP + 9)
        phi4(e, X, PK[4 * mt:4 * mt + 4], TMP + 10)
    AF = TMP + 32
    BF = TMP + 36
    e.i(f'v_cvt_pk_bf16_f32 v{AF}, v{PK[0]}, v{PK[1]}')
    e.i(f'v_cvt_pk_bf16_f32 v{AF + 1}, v{PK[2]}, v{PK[3]}')
    e.i(f'v_cvt_pk_bf16_f32 v{AF + 2}, v{PK[4]}, v{PK[5]}')
    e.i(f'v_cvt_pk_bf16_f32 v{AF + 3}, v{PK[6]}, v{PK[7]}')
    for mt in range(2):
        v0 = acc(sv, mt)
        e.i(f'v_cvt_pk_bf16_f32 v{BF + 2 * mt}, v{v0}, v{v0 + 1}')
        e.i(f'v_cvt_pk_bf16_f32 v{BF + 2 * mt + 1}, v{v0 + 2}, v{v0 + 3}')
    e.i(f'v_mfma_f32_16x16x32_bf16 {vr(res, 4)}, {vr(AF, 4)}, {vr(BF, 4)}, 0')
    e.i(f'v_mfma_f32_16x16x32_bf16 {vr(res + 4, 4)}, {vr(AF, 4)}, {vr(V_ONES, 4)}, 0')


def k1_epilogue(e, V, vname):
    kunits = [u for u in V['units'] if u[0] == 'K']
    has_f = any(u[0] == 'F' for u in V['units'])
    e.i('v_and_b32 v11, 63, v0')
    e.i(f'v_lshlrev_b32 v{V_LANE8}, 3, v11')
    e.i(f'v_lshlrev_b32 v{V_LANE4}, 2, v11')
    e.i(f'v_lshrrev_b32 v{TMP}, 5, v11')
    e.i(f'v_lshlrev_b32 v{TMP}, 8, v{TMP}')
    e.i(f'v_and_b32 v{TMP + 1}, 15, v11')
    e.i(f'v_lshl_add_u32 v{TMP}, v{TMP + 1}, 4, v{TMP}')
    e.i(f'v_bfe_u32 v{TMP + 1}, v11, 4, 1')
    e.i(f'v_lshl_add_u32 v{V_HLANE}, v{TMP + 1}, 3, v{TMP}')
    if has_f:
        e.i(f'v_mov_b32 v{V_C1}, {hx(f32bits(GELU_C1))}')
        e.i(f'v_mov_b32 v{V_C2}, {hx(f32bits(GELU_C2))}')
    fb = [u[2][1] for u in V['units'] if u[0] == 'F']
    qb = [u[2][1] for u in V['units'] if u[0] == 'Q']
    assert len(set(fb)) <= 1 and len(set(qb)) <= 1
    if fb:
        e.i(f's_mul_i32 s{S_JB}, s{S_CG}, {fb[0] * 512}')
        e.i(f's_add_u32 s{S_JB}, s{S_JB}, s{S_HB}')
    if qb:
        e.i(f's_mul_i32 s{S_QB}, s{S_CG}, {qb[0] * 512}')
        e.i(f's_add_u32 s{S_QB}, s{S_QB}, s{S_PQB}')
    if kunits:
        for r in range(4):
            e.i(f'v_mov_b32 v{V_ONES + r}, 0x3f803f80')
    res_base = BFR
    ki = 0
    kinfo = []
    nt = 2 * len(kunits)
    assert nt <= 2
    if kunits:
        e.i(f's_lshl_b32 s{S_T0}, s{S_WAVE}, 10')
        e.i(f's_add_u32 s{S_T0}, s{S_T0}, {K1_RED}')
        e.i(f'v_add_u32 v{V_REDW}, s{S_T0}, v{V_LANE16}')
    for u in V['units']:
        if u[0] == 'Q':
            epi_Q(e, u[1], u[2])
        elif u[0] == 'F':
            epi_F(e, u[1], u[2])
        else:
            epi_K(e, u[1], res_base + 8 * ki)
            for t in range(2):
                e.i(f'ds_write_b128 v{V_REDW}, {vr(res_base + 8 * ki + 4 * t, 4)} offset:{(2 * ki + t) * 8192}')
            kinfo.append(u[2])
            ki += 1
    if not kunits:
        return
    e.barrier()
    a, b = kinfo[0]
    e.i(f's_mul_i32 s{S_KVB}, s{S_CG}, {b * 2048}')
    e.i(f's_add_u32 s{S_KVB}, s{S_KVB}, {hx(KV + a * 2048)}')
    e.i(f's_lshl_b32 s{S_T0}, s{S_WAVE}, 13')
    e.i(f's_add_u32 s{S_T0}, s{S_T0}, {K1_RED}')
    e.i(f'v_add_u32 v{V_REDR}, s{S_T0}, v{V_LANE16}')
    lbl = f'K1_{vname}_RED'
    e.i(f's_cmp_ge_u32 s{S_WAVE}, {nt}')
    e.i(f's_cbranch_scc1 {lbl}_SKIP')
    R = TMP
    for w in range(8):
        e.i(f'ds_read_b128 {vr(R + 4 * w, 4)}, v{V_REDR} offset:{w * 1024}')
    for r in range(4):
        e.i(f'v_add_f32 v{R + r}, v{R + r}, v{R + 4 + r}')
        e.i(f'v_add_f32 v{R + 8 + r}, v{R + 8 + r}, v{R + 12 + r}')
        e.i(f'v_add_f32 v{R + 16 + r}, v{R + 16 + r}, v{R + 20 + r}')
        e.i(f'v_add_f32 v{R + 24 + r}, v{R + 24 + r}, v{R + 28 + r}')
    for r in range(4):
        e.i(f'v_add_f32 v{R + r}, v{R + r}, v{R + 8 + r}')
        e.i(f'v_add_f32 v{R + 16 + r}, v{R + 16 + r}, v{R + 24 + r}')
    for r in range(4):
        e.i(f'v_add_f32 v{R + r}, v{R + r}, v{R + 16 + r}')
    e.i(f's_lshl_b32 s{S_T0}, s{S_WAVE}, 10')
    e.i(f's_add_u32 s{S_T0}, s{S_T0}, s{S_KVB}')
    for r in range(4):
        e.i(f'buffer_atomic_add_f32 v{R + r}, v{V_LANE4}, s[28:31], s{S_T0} offen offset:{r * 256}')
    e.label(f'{lbl}_SKIP')


def gen_k1(e):
    e.reset_state()
    stamps_begin(e, getattr(e, 'want_stamps', False))
    kernel_header(e, K1_NAME)
    e.i('s_cmp_ge_u32 s2, 256')
    e.i('s_cbranch_scc1 K1_END')
    e.stamp('start')
    e.stamp('rt_start')
    k1_prologue(e)
    names = list(VARIANTS)
    for n in names[:-1]:
        lo, hi = VARIANTS[n]['cg']
        e.i(f's_cmp_lt_u32 s{S_CG}, {hi}')
        e.i(f's_cbranch_scc1 K1_V_{n}')
    e.i(f's_branch K1_V_{names[-1]}')
    for n in names:
        V = VARIANTS[n]
        e.label(f'K1_V_{n}')
        e.stamp_names = e.stamp_names[:2] if e.stamps_on else []
        k1_tiles(e, V)
        hooks = k1_mainloop(e, V)
        e.stamp('issued')
        k1_run(e, V, hooks)
        e.stamp('mainloop')
        k1_epilogue(e, V, n)
        e.stamp('epilogue')
        e.stamp('rt_end')
        dump_stamps(e, 'k1', 8, S_WAVE, 160)
        e.i('s_branch K1_END')
    e.label('K1_END')
    e.i('s_endpgm')
```

```python
from gen import *

K2_LDS = 131072
K2_AGPRS = 256

V_LANE16, V_LANE8, V_LANE4 = 1, 2, 3
V_XOFF = 4
V_REDW, V_REDR = 5, 6
V_C = 7
XB = 8
NST = int(os.environ.get('K2_NST', '4'))
K2_NO_O = os.environ.get('K2_NO_O') == '1'
FB = 16
KVF = 144
OF = 176
TMP = 180
K2_VGPRS = 244
A_PQ = 128
A_WO = 192

S_RB, S_CB, S_WAVE = 32, 33, 34
S_WD = 36
S_HB = 40
S_WO = 44
S_PQ = 48
S_KVB = 52
S_T0, S_T1, S_T2, S_T3 = 53, 54, 55, 56
S_XO = 57
K2_SGPRS = 80


def vr(b, n):
    return f'v[{b}:{b + n - 1}]'


def ar(b, n):
    return f'a[{b}:{b + n - 1}]'


def accf(mt, nt):
    return (mt * 4 + nt) * 4


def accs(mt, nt):
    return 64 + (mt * 4 + nt) * 4


def gen_k2(e):
    e.reset_state()
    stamps_begin(e, getattr(e, 'want_stamps', False))
    kernel_header(e, K2_NAME)
    e.i('s_cmp_ge_u32 s2, 256')
    e.i('s_cbranch_scc1 K2_END')
    e.stamp('start')
    e.stamp('rt_start')
    load_ptrs(e)
    e.stamp('args')
    make_srd(e, 28, 26, WS_SIZE)
    make_srd(e, 60, 8, S * D * 2)
    make_srd(e, 64, 22, S * D * 2)
    if os.environ.get('K2_MAP', '0') == '0':
        e.i(f's_and_b32 s{S_RB}, s2, 31')
        e.i(f's_lshr_b32 s{S_CB}, s2, 5')
    else:
        e.i(f's_lshr_b32 s{S_RB}, s2, 3')
        e.i(f's_and_b32 s{S_CB}, s2, 7')
    e.i('v_lshrrev_b32 v7, 6, v0')
    e.i(f'v_readfirstlane_b32 s{S_WAVE}, v7')
    e.i('v_and_b32 v7, 63, v0')
    e.i(f'v_lshlrev_b32 v{V_LANE16}, 4, v7')
    e.i(f'v_lshlrev_b32 v{V_LANE8}, 3, v7')
    e.i(f'v_lshlrev_b32 v{V_LANE4}, 2, v7')
    e.i(f's_mul_i32 s{S_T0}, s{S_WAVE}, {14 * 1024}')
    e.i(f's_mul_i32 s{S_T1}, s{S_CB}, {4 * 56 * 1024}')
    e.i(f's_add_u32 s{S_T1}, s{S_T1}, s{S_T0}')
    for nt in range(4):
        e.i(f's_add_u32 s{S_WD + nt}, s{S_T1}, {hx(PWD + nt * 56 * 1024)}')
    e.i(f's_mul_i32 s{S_T1}, s{S_RB}, {4 * 56 * 1024}')
    e.i(f's_add_u32 s{S_T1}, s{S_T1}, s{S_T0}')
    for mt in range(4):
        e.i(f's_add_u32 s{S_HB + mt}, s{S_T1}, {hx(HH + mt * 56 * 1024)}')
    def dload(i):
        buf = FB + (i % NST) * 32
        for nt in range(4):
            e.i(f's_add_u32 s{S_T2}, s{S_WD + nt}, {i * 1024}')
            e.i(f'buffer_load_dwordx4 {vr(buf + 4 * nt, 4)}, v{V_LANE16}, s[28:31], s{S_T2} offen')
        for mt in range(4):
            e.i(f's_add_u32 s{S_T3}, s{S_HB + mt}, {i * 1024}')
            e.i(f'buffer_load_dwordx4 {vr(buf + 16 + 4 * mt, 4)}, v{V_LANE16}, s[28:31], s{S_T3} offen')
    e.i(f's_lshl_b32 s{S_T0}, s{S_WAVE}, 12')
    e.i(f's_lshl_b32 s{S_T1}, s{S_CB}, 16')
    e.i(f's_add_u32 s{S_T1}, s{S_T1}, s{S_T0}')
    for nt in range(4):
        e.i(f's_add_u32 s{S_WO + nt}, s{S_T1}, {hx(PWO + nt * 16384)}')
    e.i(f's_lshl_b32 s{S_T1}, s{S_RB}, 16')
    e.i(f's_add_u32 s{S_T1}, s{S_T1}, s{S_T0}')
    for mt in range(4):
        e.i(f's_add_u32 s{S_PQ + mt}, s{S_T1}, {hx(PQ + mt * 16384)}')
    e.i(f's_lshl_b32 s{S_KVB}, s{S_WAVE}, 14')
    e.i(f's_add_u32 s{S_KVB}, s{S_KVB}, {hx(KV)}')

    e.i('v_and_b32 v7, 63, v0')
    e.i(f'v_and_b32 v{V_XOFF}, 15, v7')
    e.i(f'v_lshlrev_b32 v{V_XOFF}, 10, v{V_XOFF}')
    e.i(f'v_lshrrev_b32 v7, 4, v7')
    e.i(f'v_lshl_add_u32 v{V_XOFF}, v7, 3, v{V_XOFF}')
    e.i(f's_lshl_b32 s{S_XO}, s{S_RB}, 16')
    e.i(f's_lshl_b32 s{S_T0}, s{S_WAVE}, 14')
    e.i(f's_add_u32 s{S_XO}, s{S_XO}, s{S_T0}')
    e.i(f's_lshl_b32 s{S_T0}, s{S_CB}, 7')
    e.i(f's_add_u32 s{S_XO}, s{S_XO}, s{S_T0}')
    for nt in range(4):
        e.i(f'buffer_load_dwordx2 {vr(XB + 2 * nt, 2)}, v{V_XOFF}, s[60:63], s{S_XO} offen offset:{nt * 32}')
    for q in range(16 if not K2_NO_O else 0):
        tb = TMP + q * 4
        for i in range(4):
            e.i(f'buffer_load_dword v{tb + i}, v{V_LANE4}, s[28:31], s{S_KVB} offen offset:{(q * 1024) % 4096 + i * 256}')
        if q % 4 == 3 and q != 15:
            e.i(f's_add_u32 s{S_KVB}, s{S_KVB}, 4096')
    for mt in range(4 if not K2_NO_O else 0):
        for hh in range(8):
            e.i(f'buffer_load_dwordx2 {ar(A_PQ + (mt * 8 + hh) * 2, 2)}, v{V_LANE8}, s[28:31], s{S_PQ + mt} offen offset:{hh * 512}')
    for ks in range(4 if not K2_NO_O else 0):
        for nt in range(4):
            e.i(f'buffer_load_dwordx4 {ar(A_WO + (ks * 4 + nt) * 4, 4)}, v{V_LANE16}, s[28:31], s{S_WO + nt} offen offset:{ks * 1024}')
    for i in range(NST - 1):
        dload(i)
    e.stamp('issued')
    for q in range(16 if not K2_NO_O else 0):
        tb = TMP + q * 4
        d = KVF + (q >> 1) * 4 + (q & 1) * 2
        e.i(f'v_cvt_pk_bf16_f32 v{d}, v{tb}, v{tb + 1}')
        e.i(f'v_cvt_pk_bf16_f32 v{d + 1}, v{tb + 2}, v{tb + 3}')
    e.stamp('kv_done')

    def o_slice(hp, mt):
        NUM = TMP
        DEN = TMP + 8
        for hh in range(2):
            kvf = KVF + (hp * 2 + hh) * 4
            pq = ar(A_PQ + (mt * 8 + hp * 2 + hh) * 2, 2)
            e.i(f'v_mfma_f32_16x16x16_bf16 {vr(NUM + 4 * hh, 4)}, {vr(kvf, 2)}, {pq}, 0')
            e.i(f'v_mfma_f32_16x16x16_bf16 {vr(DEN + 4 * hh, 4)}, {vr(kvf + 2, 2)}, {pq}, 0')
        for hh in range(2):
            n = [NUM + 4 * hh + r for r in range(4)]
            dn = DEN + 4 * hh
            t = TMP + 16 + hh * 8
            e.i(f'v_cvt_pk_bf16_f32 v{t}, v{dn}, v{dn}')
            e.i(f'v_lshlrev_b32 v{t}, 16, v{t}')
            e.i(f'v_add_f32 v{t}, {hx(f32bits(1e-6))}, v{t}')
            e.i(f'v_cvt_pk_bf16_f32 v{t}, v{t}, v{t}')
            e.i(f'v_lshlrev_b32 v{t}, 16, v{t}')
            e.i(f'v_rcp_f32 v{t}, v{t}')
            e.i(f'v_cvt_pk_bf16_f32 v{t + 1}, v{n[0]}, v{n[1]}')
            e.i(f'v_cvt_pk_bf16_f32 v{t + 2}, v{n[2]}, v{n[3]}')
            e.i(f'v_lshlrev_b32 v{n[0]}, 16, v{t + 1}')
            e.i(f'v_and_b32 v{n[1]}, 0xffff0000, v{t + 1}')
            e.i(f'v_lshlrev_b32 v{n[2]}, 16, v{t + 2}')
            e.i(f'v_and_b32 v{n[3]}, 0xffff0000, v{t + 2}')
            for r in range(4):
                e.i(f'v_mul_f32 v{n[r]}, v{n[r]}, v{t}')
            e.i(f'v_cvt_pk_bf16_f32 v{OF + 2 * hh}, v{n[0]}, v{n[1]}')
            e.i(f'v_cvt_pk_bf16_f32 v{OF + 2 * hh + 1}, v{n[2]}, v{n[3]}')
        for nt in range(4):
            c = '0' if hp == 0 else ar(accs(mt, nt), 4)
            e.i(f'v_mfma_f32_16x16x32_bf16 {ar(accs(mt, nt), 4)}, {ar(A_WO + (hp * 4 + nt) * 4, 4)}, {vr(OF, 4)}, {c}')

    def down_step(i):
        if i + NST - 1 < 14:
            dload(i + NST - 1)
        buf = FB + (i % NST) * 32
        for mt in range(4):
            for nt in range(4):
                c = '0' if i == 0 else ar(accf(mt, nt), 4)
                e.i(f'v_mfma_f32_16x16x32_bf16 {ar(accf(mt, nt), 4)}, {vr(buf + 4 * nt, 4)}, {vr(buf + 16 + 4 * mt, 4)}, {c}')

    for t in range(16):
        if not K2_NO_O:
            o_slice(t >> 2, t & 3)
        if 2 <= t:
            down_step(t - 2)
    e.stamp('o_done')
    e.i(f's_lshl_b32 s{S_T0}, s{S_WAVE}, 15')
    e.i(f'v_add_u32 v{V_REDW}, s{S_T0}, v{V_LANE16}')
    e.i(f's_lshl_b32 s{S_T1}, s{S_WAVE}, 12')
    e.i(f'v_add_u32 v{V_REDR}, s{S_T1}, v{V_LANE16}')
    lblw = {}
    for mt in range(4):
        e.i(f's_cmp_eq_u32 s{S_WAVE}, {mt}')
        e.i(f's_cbranch_scc1 K2_WSKIP{mt}')
        for a_i, base in ((0, accf), (1, accs)):
            for nt in range(4):
                off = (a_i * 16 + mt * 4 + nt) * 1024
                e.i(f'ds_write_b128 v{V_REDW}, {ar(base(mt, nt), 4)} offset:{off}')
        e.label(f'K2_WSKIP{mt}')
    e.barrier()
    R = TMP
    for mt in range(4):
        e.i(f's_cmp_lg_u32 s{S_WAVE}, {mt}')
        e.i(f's_cbranch_scc1 K2_OWN{mt}')
        for a_i, base in ((0, accf), (1, accs)):
            for nt in range(4):
                for r in range(4):
                    e.i(f'v_accvgpr_read_b32 v{R + (a_i * 4 + nt) * 4 + r}, a{base(mt, nt) + r}')
        e.label(f'K2_OWN{mt}')
    P = FB
    for k in range(1, 4):
        e.i(f's_add_u32 s{S_T0}, s{S_WAVE}, {k}')
        e.i(f's_and_b32 s{S_T0}, s{S_T0}, 3')
        e.i(f's_lshl_b32 s{S_T0}, s{S_T0}, 15')
        e.i(f'v_add_u32 v{V_C}, s{S_T0}, v{V_REDR}')
        for a_i in range(2):
            for nt in range(4):
                e.i(f'ds_read_b128 {vr(P + (a_i * 4 + nt) * 4, 4)}, v{V_C} offset:{(a_i * 16 + nt) * 1024}')
        for j in range(32):
            e.i(f'v_add_f32 v{R + j}, v{R + j}, v{P + j}')

    e.stamp('red_done')
    T = FB + 48
    for nt in range(4):
        f = [R + nt * 4 + r for r in range(4)]
        sv = [R + 16 + nt * 4 + r for r in range(4)]
        e.i(f'v_cvt_pk_bf16_f32 v{T}, v{f[0]}, v{f[1]}')
        e.i(f'v_cvt_pk_bf16_f32 v{T + 1}, v{f[2]}, v{f[3]}')
        e.i(f'v_lshlrev_b32 v{f[0]}, 16, v{T}')
        e.i(f'v_and_b32 v{f[1]}, 0xffff0000, v{T}')
        e.i(f'v_lshlrev_b32 v{f[2]}, 16, v{T + 1}')
        e.i(f'v_and_b32 v{f[3]}, 0xffff0000, v{T + 1}')
        G = [T + 4 + r for r in range(4)]
        for r in range(4):
            e.i(f'v_mul_f32 v{G[r]}, {hx(f32bits(-LOG2E))}, v{f[r]}')
        for r in range(4):
            e.i(f'v_exp_f32 v{G[r]}, v{G[r]}')
        for r in range(4):
            e.i(f'v_add_f32 v{G[r]}, 1.0, v{G[r]}')
        for r in range(4):
            e.i(f'v_rcp_f32 v{G[r]}, v{G[r]}')
        for r in range(4):
            e.i(f'v_mul_f32 v{G[r]}, v{f[r]}, v{G[r]}')
        e.i(f'v_cvt_pk_bf16_f32 v{T}, v{G[0]}, v{G[1]}')
        e.i(f'v_cvt_pk_bf16_f32 v{T + 1}, v{G[2]}, v{G[3]}')
        e.i(f'v_lshlrev_b32 v{G[0]}, 16, v{T}')
        e.i(f'v_and_b32 v{G[1]}, 0xffff0000, v{T}')
        e.i(f'v_lshlrev_b32 v{G[2]}, 16, v{T + 1}')
        e.i(f'v_and_b32 v{G[3]}, 0xffff0000, v{T + 1}')
        e.i(f'v_cvt_pk_bf16_f32 v{T}, v{sv[0]}, v{sv[1]}')
        e.i(f'v_cvt_pk_bf16_f32 v{T + 1}, v{sv[2]}, v{sv[3]}')
        e.i(f'v_lshlrev_b32 v{sv[0]}, 16, v{T}')
        e.i(f'v_and_b32 v{sv[1]}, 0xffff0000, v{T}')
        e.i(f'v_lshlrev_b32 v{sv[2]}, 16, v{T + 1}')
        e.i(f'v_and_b32 v{sv[3]}, 0xffff0000, v{T + 1}')
        for r in range(4):
            e.i(f'v_mul_f32 v{G[r]}, v{sv[r]}, v{G[r]}')
        e.i(f'v_cvt_pk_bf16_f32 v{T}, v{G[0]}, v{G[1]}')
        e.i(f'v_cvt_pk_bf16_f32 v{T + 1}, v{G[2]}, v{G[3]}')
        e.i(f'v_lshlrev_b32 v{G[0]}, 16, v{T}')
        e.i(f'v_and_b32 v{G[1]}, 0xffff0000, v{T}')
        e.i(f'v_lshlrev_b32 v{G[2]}, 16, v{T + 1}')
        e.i(f'v_and_b32 v{G[3]}, 0xffff0000, v{T + 1}')
        xb = XB + 2 * nt
        X = [T + 8 + r for r in range(4)]
        e.i(f'v_lshlrev_b32 v{X[0]}, 16, v{xb}')
        e.i(f'v_and_b32 v{X[1]}, 0xffff0000, v{xb}')
        e.i(f'v_lshlrev_b32 v{X[2]}, 16, v{xb + 1}')
        e.i(f'v_and_b32 v{X[3]}, 0xffff0000, v{xb + 1}')
        for r in range(4):
            e.i(f'v_add_f32 v{G[r]}, v{X[r]}, v{G[r]}')
        e.i(f'v_cvt_pk_bf16_f32 v{T + 12 + 2 * (nt & 1)}, v{G[0]}, v{G[1]}')
        e.i(f'v_cvt_pk_bf16_f32 v{T + 13 + 2 * (nt & 1)}, v{G[2]}, v{G[3]}')
        e.i(f'buffer_store_dwordx2 {vr(T + 12 + 2 * (nt & 1), 2)}, v{V_XOFF}, s[64:67], s{S_XO} offen offset:{nt * 32}')
    e.stamp('end')
    e.stamp('rt_end')
    dump_stamps(e, 'k2', 4, S_WAVE, 172)
    e.label('K2_END')
    e.i('s_endpgm')
```

```python
import sys, os, struct
sys.path.insert(0, os.path.dirname(os.path.abspath(__file__)))
from asmgen import Emitter

S, D, F = 2048, 512, 1792
NH = 32

XN = 0x0000000
PW1 = 0x0200000
PWD = 0x0700000
PWO = 0x0900000
PQ = 0x0A00000
HH = 0x0C00000
KV = 0x1300000
WS_SIZE = 0x1400000

K0_NAME = 'recurrent_scan__linear_attn_block__geglu_ffn__prompt_kernel'
K1_NAME = 'k1_gemm_kernel'
K2_NAME = 'k2_gemm_kernel'


def f32bits(x):
    return struct.unpack('<I', struct.pack('<f', x))[0]


def hx(x):
    return f'0x{x & 0xffffffff:x}'


LOG2E = 1.4426950408889634
SQRT2PI = 0.7978845608028654


def kernel_header(e, name):
    e.raw('.text')
    e.raw(f'.globl {name}')
    e.raw('.p2align 8')
    e.raw(f'.type {name},@function')
    e.raw(f'{name}:')


def kernel_desc(name, vgprs, sgprs, accum_offset):
    assert accum_offset % 4 == 0
    return f'''.amdhsa_kernel {name}
  .amdhsa_next_free_vgpr {vgprs}
  .amdhsa_next_free_sgpr {sgprs}
  .amdhsa_accum_offset {accum_offset}
  .amdhsa_group_segment_fixed_size 0
  .amdhsa_kernarg_size 80
  .amdhsa_user_sgpr_count 2
  .amdhsa_user_sgpr_kernarg_segment_ptr 1
  .amdhsa_system_sgpr_workgroup_id_x 1
.end_amdhsa_kernel
'''


def load_ptrs(e):
    e.raw('    s_load_dwordx8 s[8:15], s[0:1], 0')
    e.raw('    s_load_dwordx8 s[16:23], s[0:1], 32')
    e.raw('    s_load_dwordx4 s[24:27], s[0:1], 64')
    e.raw('    s_waitcnt lgkmcnt(0)')
    e.t += 4


STAMP_REGION = {'k1': 0x1340000, 'k2': 0x1380000}


def stamps_begin(e, enable):
    e.stamps_on = enable
    e.stamp_names = []
    e.stamp_base = 78


def dump_stamps(e, which, nwaves, s_wave, vt):
    if not getattr(e, 'stamps_on', False):
        return
    e.raw('    s_waitcnt lgkmcnt(0)')
    e.i(f's_mul_i32 s77, s2, {nwaves * 128}')
    e.i(f's_lshl_b32 s76, s{s_wave}, 7')
    e.i('s_add_u32 s77, s77, s76')
    e.i(f's_add_u32 s77, s77, {hx(STAMP_REGION[which])}')
    e.i(f'v_mov_b32 v{vt + 2}, 0')
    for k, name in enumerate(e.stamp_names):
        e.i(f'v_mov_b32 v{vt}, s{e.stamp_base + 2 * k}')
        e.i(f'v_mov_b32 v{vt + 1}, s{e.stamp_base + 2 * k + 1}')
        e.i(f'buffer_store_dwordx2 v[{vt}:{vt + 1}], v{vt + 2}, s[28:31], s77 offen offset:{k * 8}')
    e.all_stamp_names = getattr(e, 'all_stamp_names', {})
    e.all_stamp_names[which] = list(e.stamp_names)


def make_srd(e, d, lo, nbytes):
    e.i(f's_mov_b32 s{d}, s{lo}')
    e.i(f's_and_b32 s{d + 1}, s{lo + 1}, 0xffff')
    e.i(f's_mov_b32 s{d + 2}, {hx(nbytes)}')
    e.i(f's_mov_b32 s{d + 3}, 0x00020000')


def round_bf16(e, dst, src, tmp):
    e.i(f'v_cvt_pk_bf16_f32 v{tmp}, v{src}, v{src}')
    e.i(f'v_lshlrev_b32 v{dst}, 16, v{tmp}')


def round_bf16_pair(e, d0, d1, s0, s1, tmp):
    e.i(f'v_cvt_pk_bf16_f32 v{tmp}, v{s0}, v{s1}')
    e.i(f'v_lshlrev_b32 v{d0}, 16, v{tmp}')
    e.i(f'v_and_b32 v{d1}, 0xffff0000, v{tmp}')


K0_LN = 128
K0_SHUF = [
    ('wqkv', 36, 3072, 16, PW1, 0, 24, False),
    ('gate', 44, 3584, 16, PW1, 96, 28, False),
    ('up', 48, 3584, 16, PW1, 208, 28, False),
    ('down', 52, 1024, 56, PWD, 0, 8, False),
    ('wo', 40, 1024, 16, PWO, 0, 8, True),
]
K0_LDS_WAVE = 4608
K0_LDS = 4 * K0_LDS_WAVE


def k0_layout():
    wg = K0_LN
    out = []
    for spec in K0_SHUF:
        ntask = spec[3] * spec[6]
        assert ntask % 4 == 0
        out.append((wg, wg + ntask // 4, spec))
        wg += ntask // 4
    zero_wg = wg
    return out, zero_wg, wg + 1


def gen_k0(e):
    e.reset_state()
    shuf, zero_wg, total = k0_layout()
    kernel_header(e, K0_NAME)
    e.i(f's_cmp_ge_u32 s2, {total}')
    e.i('s_cbranch_scc1 K0_END')
    load_ptrs(e)
    make_srd(e, 28, 26, WS_SIZE)
    make_srd(e, 32, 8, S * D * 2)
    make_srd(e, 36, 10, D * 3 * D * 2)
    make_srd(e, 40, 12, D * D * 2)
    make_srd(e, 44, 16, D * F * 2)
    make_srd(e, 48, 18, D * F * 2)
    make_srd(e, 52, 20, F * D * 2)
    e.i(f's_cmp_lt_u32 s2, {K0_LN}')
    e.i('s_cbranch_scc1 K0_LNPATH')
    for k, (lo, hi, spec) in enumerate(shuf):
        e.i(f's_cmp_lt_u32 s2, {hi}')
        e.i(f's_cbranch_scc1 K0_SHUF{k}')
    e.i('v_mov_b32 v4, 0')
    e.i('v_mov_b32 v5, 0')
    e.i('v_mov_b32 v6, 0')
    e.i('v_mov_b32 v7, 0')
    e.i('v_lshlrev_b32 v1, 4, v0')
    e.i(f's_mov_b32 s60, {hx(KV)}')
    for r in range(16):
        e.i(f'buffer_store_dwordx4 v[4:7], v1, s[28:31], s60 offen')
        if r != 15:
            e.i('s_add_u32 s60, s60, 4096')
    e.i('s_branch K0_END')

    e.label('K0_LNPATH')
    e.i('s_lshl_b32 s60, s2, 14')
    e.i('v_lshrrev_b32 v1, 4, v0')
    e.i('v_and_b32 v2, 15, v0')
    e.i('v_lshlrev_b32 v3, 10, v1')
    e.i('v_lshl_add_u32 v3, v2, 4, v3')
    for i in range(4):
        e.i(f'buffer_load_dwordx4 v[{4 + 4 * i}:{7 + 4 * i}], v3, s[32:35], s60 offen offset:{256 * i}')
    for k in range(16):
        e.i(f'v_lshlrev_b32 v{20 + 2 * k}, 16, v{4 + k}')
        e.i(f'v_and_b32 v{21 + 2 * k}, 0xffff0000, v{4 + k}')
    e.i('v_add_f32 v52, v20, v21')
    e.i('v_add_f32 v53, v22, v23')
    for k in range(2, 16):
        e.i(f'v_add_f32 v52, v52, v{20 + 2 * k}')
        e.i(f'v_add_f32 v53, v53, v{21 + 2 * k}')
    e.i('v_add_f32 v52, v52, v53')

    def row_reduce(reg, tmp):
        for sh in (8, 4, 2, 1):
            e.i(f'v_add_f32_dpp v{tmp}, v{reg}, v{reg} row_ror:{sh} row_mask:0xf bank_mask:0xf')
            e.i(f'v_mov_b32 v{reg}, v{tmp}')

    row_reduce(52, 54)
    e.i(f'v_mul_f32 v52, {hx(f32bits(1.0 / 512))}, v52')
    e.i('v_mov_b32 v55, 0')
    e.i('v_mov_b32 v56, 0')
    for k in range(16):
        e.i(f'v_sub_f32 v57, v{20 + 2 * k}, v52')
        e.i(f'v_sub_f32 v58, v{21 + 2 * k}, v52')
        e.i('v_fmac_f32 v55, v57, v57')
        e.i('v_fmac_f32 v56, v58, v58')
    e.i('v_add_f32 v55, v55, v56')
    row_reduce(55, 54)
    e.i(f'v_mul_f32 v55, {hx(f32bits(1.0 / 512))}, v55')
    round_bf16(e, 52, 52, 54)
    round_bf16(e, 55, 55, 54)
    e.i(f'v_add_f32 v55, {hx(f32bits(1e-5))}, v55')
    round_bf16(e, 55, 55, 54)
    e.i('v_sqrt_f32 v55, v55')
    round_bf16(e, 55, 55, 54)
    e.i('v_rcp_f32 v55, v55')
    e.i('v_lshrrev_b32 v56, 2, v2')
    e.i('v_lshlrev_b32 v56, 10, v56')
    e.i('v_and_b32 v57, 3, v2')
    e.i('v_lshl_add_u32 v56, v57, 8, v56')
    e.i('v_lshl_add_u32 v56, v1, 4, v56')
    for i in range(4):
        for q in range(4):
            k = i * 4 + q
            a, b = 20 + 2 * k, 21 + 2 * k
            e.i(f'v_sub_f32 v{a}, v{a}, v52')
            e.i(f'v_sub_f32 v{b}, v{b}, v52')
            round_bf16_pair(e, a, b, a, b, 58)
            e.i(f'v_mul_f32 v{a}, v{a}, v55')
            e.i(f'v_mul_f32 v{b}, v{b}, v55')
            e.i(f'v_cvt_pk_bf16_f32 v{4 + k}, v{a}, v{b}')
        if i:
            e.i(f's_add_u32 s61, s60, {4096 * i}')
        soff = 's60' if i == 0 else 's61'
        e.i(f'buffer_store_dwordx4 v[{4 + 4 * i}:{7 + 4 * i}], v56, s[28:31], {soff} offen')
    e.i('s_branch K0_END')

    for k, (lo, hi, spec) in enumerate(shuf):
        name, srd, pitch, nS, region, tile_base, ntg, inter = spec
        e.label(f'K0_SHUF{k}')
        e.i('v_lshrrev_b32 v1, 6, v0')
        e.i('v_readfirstlane_b32 s60, v1')
        e.i(f's_sub_u32 s61, s2, {lo}')
        e.i('s_lshl_b32 s61, s61, 2')
        e.i('s_add_u32 s61, s61, s60')
        if nS == 16:
            e.i('s_and_b32 s62, s61, 15')
            e.i('s_lshr_b32 s63, s61, 4')
        else:
            e.i('s_and_b32 s63, s61, 7')
            e.i('s_lshr_b32 s62, s61, 3')
        e.i(f's_mul_i32 s64, s62, {32 * pitch}')
        e.i('s_lshl_b32 s65, s63, 7')
        e.i('s_add_u32 s64, s64, s65')
        e.i('v_and_b32 v2, 63, v0')
        e.i('v_lshrrev_b32 v3, 3, v2')
        e.i(f'v_mul_u32_u24 v4, {pitch}, v3')
        e.i('v_and_b32 v5, 7, v2')
        e.i('v_lshl_add_u32 v4, v5, 4, v4')
        for i in range(4):
            if i:
                e.i(f's_add_u32 s64, s64, {8 * pitch}')
            e.i(f'buffer_load_dwordx4 v[{8 + 4 * i}:{11 + 4 * i}], v4, s[{srd}:{srd + 3}], s64 offen')
        e.i(f's_mul_i32 s66, s60, {K0_LDS_WAVE}')
        e.i('v_mul_u32_u24 v6, 144, v3')
        e.i('v_lshl_add_u32 v6, v5, 4, v6')
        e.i('v_add_u32 v6, s66, v6')
        e.i('v_lshrrev_b32 v7, 4, v2')
        e.i('v_bfe_u32 v24, v2, 2, 2')
        e.i(f'v_lshlrev_b32 v7, {3 if not inter else 2}, v7')
        e.i('v_add_u32 v7, v7, v24')
        e.i('v_mul_u32_u24 v7, 144, v7')
        e.i('v_and_b32 v24, 3, v2')
        e.i('v_lshl_add_u32 v7, v24, 3, v7')
        e.i('v_add_u32 v7, s66, v7')
        for i in range(4):
            e.i(f'ds_write_b128 v6, v[{8 + 4 * i}:{11 + 4 * i}] offset:{i * 8 * 144}')
        off2 = (4 if not inter else 16) * 144
        e.i(f's_mul_i32 s67, s63, {4 * nS * 1024}')
        e.i('s_lshl_b32 s68, s62, 10')
        e.i('s_add_u32 s67, s67, s68')
        e.i(f's_add_u32 s67, s67, {hx(region + tile_base * nS * 1024)}')
        e.i('v_lshlrev_b32 v25, 4, v2')
        for q in range(4):
            e.i(f'ds_read_b64_tr_b16 v[{28 + 4 * q}:{29 + 4 * q}], v7 offset:{q * 32}')
            e.i(f'ds_read_b64_tr_b16 v[{30 + 4 * q}:{31 + 4 * q}], v7 offset:{q * 32 + off2}')
        for q in range(4):
            if q:
                e.i(f's_add_u32 s67, s67, {nS * 1024}')
            e.i(f'buffer_store_dwordx4 v[{28 + 4 * q}:{31 + 4 * q}], v25, s[28:31], s67 offen')
        e.i('s_branch K0_END')
    e.label('K0_END')
    e.i('s_endpgm')
    return total


def build(path, parts=('k0', 'k1', 'k2'), stamps=False):
    launches = []
    body = Emitter()
    body.store_mod = os.environ.get('STORE_MOD', 'sc1')
    body.want_stamps = stamps
    descs = []
    total0 = gen_k0(body)
    launches.append(f'; @launch kernel={K0_NAME} grid=({total0},1,1) block=(256,1,1) lds={K0_LDS}')
    descs.append(kernel_desc(K0_NAME, 64, 96, 64))
    if 'k1' in parts:
        import gen_k1
        gen_k1.gen_k1(body)
        launches.append(f'; @launch kernel={K1_NAME} grid=(256,1,1) block=(512,1,1) lds={gen_k1.K1_LDS}')
        descs.append(kernel_desc(K1_NAME, gen_k1.K1_VGPRS, 102 if stamps else gen_k1.K1_SGPRS, gen_k1.K1_VGPRS))
    if 'k2' in parts:
        import gen_k2
        gen_k2.gen_k2(body)
        launches.append(f'; @launch kernel={K2_NAME} grid=(256,1,1) block=(256,1,1) lds={gen_k2.K2_LDS}')
        descs.append(kernel_desc(K2_NAME, gen_k2.K2_VGPRS + gen_k2.K2_AGPRS, 102 if stamps else gen_k2.K2_SGPRS, gen_k2.K2_VGPRS))
    head = ['; generated by gen/gen.py -- do not edit by hand'] + launches
    out = '\n'.join(head) + '\n.amdgcn_target "amdgcn-amd-amdhsa--gfx950"\n' + body.text()
    out += '.section .rodata,"a"\n.p2align 6\n' + '\n.p2align 6\n'.join(descs)
    open(path, 'w').write(out)
    print('wrote', path, len(out), 'bytes')
    if stamps:
        import json
        json.dump(getattr(body, 'all_stamp_names', {}), open(path + '.stamps.json', 'w'))


if __name__ == '__main__':
    path = sys.argv[1] if len(sys.argv) > 1 else 'k0.s'
    parts = tuple(sys.argv[2].split(',')) if len(sys.argv) > 2 else ('k0', 'k1', 'k2')
    build(path, parts, stamps=(len(sys.argv) > 3 and sys.argv[3] == 'stamps'))
```

```python
import sys, os, struct
sys.path.insert(0, os.path.dirname(os.path.abspath(__file__)))
from asmgen import Emitter

S, D, F = 2048, 512, 1792
NH = 32

XN = 0x0000000
PW1 = 0x0200000
PWD = 0x0700000
PWO = 0x0900000
PQ = 0x0A00000
HH = 0x0C00000
KV = 0x1300000
WS_SIZE = 0x1400000

K0_NAME = 'recurrent_scan__linear_attn_block__geglu_ffn__prompt_kernel'
K1_NAME = 'k1_gemm_kernel'
K2_NAME = 'k2_gemm_kernel'


def f32bits(x):
    return struct.unpack('<I', struct.pack('<f', x))[0]


def hx(x):
    return f'0x{x & 0xffffffff:x}'


LOG2E = 1.4426950408889634
SQRT2PI = 0.7978845608028654


def kernel_header(e, name):
    e.raw('.text')
    e.raw(f'.globl {name}')
    e.raw('.p2align 8')
    e.raw(f'.type {name},@function')
    e.raw(f'{name}:')


def kernel_desc(name, vgprs, sgprs, accum_offset):
    assert accum_offset % 4 == 0
    return f'''.amdhsa_kernel {name}
  .amdhsa_next_free_vgpr {vgprs}
  .amdhsa_next_free_sgpr {sgprs}
  .amdhsa_accum_offset {accum_offset}
  .amdhsa_group_segment_fixed_size 0
  .amdhsa_kernarg_size 80
  .amdhsa_user_sgpr_count 2
  .amdhsa_user_sgpr_kernarg_segment_ptr 1
  .amdhsa_system_sgpr_workgroup_id_x 1
.end_amdhsa_kernel
'''


def load_ptrs(e):
    e.raw('    s_load_dwordx8 s[8:15], s[0:1], 0')
    e.raw('    s_load_dwordx8 s[16:23], s[0:1], 32')
    e.raw('    s_load_dwordx4 s[24:27], s[0:1], 64')
    e.raw('    s_waitcnt lgkmcnt(0)')
    e.t += 4


STAMP_REGION = {'k1': 0x1340000, 'k2': 0x1380000, 'k0': 0x13A0000}


def stamps_begin(e, enable):
    e.stamps_on = enable
    e.stamp_names = []
    e.stamp_base = 78


def dump_stamps(e, which, nwaves, s_wave, vt):
    if not getattr(e, 'stamps_on', False):
        return
    e.raw('    s_waitcnt lgkmcnt(0)')
    e.i(f's_mul_i32 s77, s2, {nwaves * 128}')
    e.i(f's_lshl_b32 s76, s{s_wave}, 7')
    e.i('s_add_u32 s77, s77, s76')
    e.i(f's_add_u32 s77, s77, {hx(STAMP_REGION[which])}')
    e.i(f'v_mov_b32 v{vt + 2}, 0')
    for k, name in enumerate(e.stamp_names):
        e.i(f'v_mov_b32 v{vt}, s{e.stamp_base + 2 * k}')
        e.i(f'v_mov_b32 v{vt + 1}, s{e.stamp_base + 2 * k + 1}')
        e.i(f'buffer_store_dwordx2 v[{vt}:{vt + 1}], v{vt + 2}, s[28:31], s77 offen offset:{k * 8}')
    e.all_stamp_names = getattr(e, 'all_stamp_names', {})
    e.all_stamp_names[which] = list(e.stamp_names)


def make_srd(e, d, lo, nbytes):
    e.i(f's_mov_b32 s{d}, s{lo}')
    e.i(f's_and_b32 s{d + 1}, s{lo + 1}, 0xffff')
    e.i(f's_mov_b32 s{d + 2}, {hx(nbytes)}')
    e.i(f's_mov_b32 s{d + 3}, 0x00020000')


def round_bf16(e, dst, src, tmp):
    e.i(f'v_cvt_pk_bf16_f32 v{tmp}, v{src}, v{src}')
    e.i(f'v_lshlrev_b32 v{dst}, 16, v{tmp}')


def round_bf16_pair(e, d0, d1, s0, s1, tmp):
    e.i(f'v_cvt_pk_bf16_f32 v{tmp}, v{s0}, v{s1}')
    e.i(f'v_lshlrev_b32 v{d0}, 16, v{tmp}')
    e.i(f'v_and_b32 v{d1}, 0xffff0000, v{tmp}')


K0_LN = 128
K0_SHUF = [
    ('wqkv', 36, 3072, 16, PW1, 0, 24, False),
    ('gate', 44, 3584, 16, PW1, 96, 28, False),
    ('up', 48, 3584, 16, PW1, 208, 28, False),
    ('down', 52, 1024, 56, PWD, 0, 8, False),
    ('wo', 40, 1024, 16, PWO, 0, 8, True),
]
K0_LDS_WAVE = 4608
K0_LDS = 4 * K0_LDS_WAVE


def k0_layout():
    wg = K0_LN
    out = []
    for spec in K0_SHUF:
        ntask = spec[3] * spec[6]
        assert ntask % 4 == 0
        out.append((wg, wg + ntask // 4, spec))
        wg += ntask // 4
    zero_wg = wg
    return out, zero_wg, wg + 1


def gen_k0(e):
    e.reset_state()
    stamps_begin(e, getattr(e, 'want_stamps', False))
    shuf, zero_wg, total = k0_layout()
    kernel_header(e, K0_NAME)
    e.i(f's_cmp_ge_u32 s2, {total}')
    e.i('s_cbranch_scc1 K0_END')
    e.stamp('start')
    e.stamp('rt_start')
    load_ptrs(e)
    e.stamp('args')
    if e.stamps_on:
        e.i('v_lshrrev_b32 v60, 6, v0')
        e.i('v_readfirstlane_b32 s75, v60')
    make_srd(e, 28, 26, WS_SIZE)
    make_srd(e, 32, 8, S * D * 2)
    make_srd(e, 36, 10, D * 3 * D * 2)
    make_srd(e, 40, 12, D * D * 2)
    make_srd(e, 44, 16, D * F * 2)
    make_srd(e, 48, 18, D * F * 2)
    make_srd(e, 52, 20, F * D * 2)
    e.i(f's_cmp_lt_u32 s2, {K0_LN}')
    e.i('s_cbranch_scc1 K0_LNPATH')
    for k, (lo, hi, spec) in enumerate(shuf):
        e.i(f's_cmp_lt_u32 s2, {hi}')
        e.i(f's_cbranch_scc1 K0_SHUF{k}')
    e.i('v_mov_b32 v4, 0')
    e.i('v_mov_b32 v5, 0')
    e.i('v_mov_b32 v6, 0')
    e.i('v_mov_b32 v7, 0')
    e.i('v_lshlrev_b32 v1, 4, v0')
    e.i(f's_mov_b32 s60, {hx(KV)}')
    for r in range(16):
        e.i(f'buffer_store_dwordx4 v[4:7], v1, s[28:31], s60 offen')
        if r != 15:
            e.i('s_add_u32 s60, s60, 4096')
    e.i('s_branch K0_END')

    e.label('K0_LNPATH')
    e.i('s_lshl_b32 s60, s2, 14')
    e.i('v_lshrrev_b32 v1, 4, v0')
    e.i('v_and_b32 v2, 15, v0')
    e.i('v_lshlrev_b32 v3, 10, v1')
    e.i('v_lshl_add_u32 v3, v2, 4, v3')
    for i in range(4):
        e.i(f'buffer_load_dwordx4 v[{4 + 4 * i}:{7 + 4 * i}], v3, s[32:35], s60 offen offset:{256 * i}')
    e.i('v_mov_b32 v60, v4')
    e.i('v_mov_b32 v60, v19')
    e.stamp('loaded')
    for k in range(16):
        e.i(f'v_lshlrev_b32 v{20 + 2 * k}, 16, v{4 + k}')
        e.i(f'v_and_b32 v{21 + 2 * k}, 0xffff0000, v{4 + k}')
    e.i('v_add_f32 v52, v20, v21')
    e.i('v_add_f32 v53, v22, v23')
    for k in range(2, 16):
        e.i(f'v_add_f32 v52, v52, v{20 + 2 * k}')
        e.i(f'v_add_f32 v53, v53, v{21 + 2 * k}')
    e.i('v_add_f32 v52, v52, v53')

    def row_reduce(reg, tmp):
        for sh in (8, 4, 2, 1):
            e.i(f'v_add_f32_dpp v{tmp}, v{reg}, v{reg} row_ror:{sh} row_mask:0xf bank_mask:0xf')
            e.i(f'v_mov_b32 v{reg}, v{tmp}')

    row_reduce(52, 54)
    e.i(f'v_mul_f32 v52, {hx(f32bits(1.0 / 512))}, v52')
    e.i('v_mov_b32 v55, 0')
    e.i('v_mov_b32 v56, 0')
    for k in range(16):
        e.i(f'v_sub_f32 v57, v{20 + 2 * k}, v52')
        e.i(f'v_sub_f32 v58, v{21 + 2 * k}, v52')
        e.i('v_fmac_f32 v55, v57, v57')
        e.i('v_fmac_f32 v56, v58, v58')
    e.i('v_add_f32 v55, v55, v56')
    row_reduce(55, 54)
    e.i(f'v_mul_f32 v55, {hx(f32bits(1.0 / 512))}, v55')
    round_bf16(e, 52, 52, 54)
    round_bf16(e, 55, 55, 54)
    e.i(f'v_add_f32 v55, {hx(f32bits(1e-5))}, v55')
    round_bf16(e, 55, 55, 54)
    e.i('v_sqrt_f32 v55, v55')
    round_bf16(e, 55, 55, 54)
    e.i('v_rcp_f32 v55, v55')
    e.i('v_lshrrev_b32 v56, 2, v2')
    e.i('v_lshlrev_b32 v56, 10, v56')
    e.i('v_and_b32 v57, 3, v2')
    e.i('v_lshl_add_u32 v56, v57, 8, v56')
    e.i('v_lshl_add_u32 v56, v1, 4, v56')
    for i in range(4):
        for q in range(4):
            k = i * 4 + q
            a, b = 20 + 2 * k, 21 + 2 * k
            e.i(f'v_sub_f32 v{a}, v{a}, v52')
            e.i(f'v_sub_f32 v{b}, v{b}, v52')
            round_bf16_pair(e, a, b, a, b, 58)
            e.i(f'v_mul_f32 v{a}, v{a}, v55')
            e.i(f'v_mul_f32 v{b}, v{b}, v55')
            e.i(f'v_cvt_pk_bf16_f32 v{4 + k}, v{a}, v{b}')
        if i:
            e.i(f's_add_u32 s61, s60, {4096 * i}')
        soff = 's60' if i == 0 else 's61'
        e.i(f'buffer_store_dwordx4 v[{4 + 4 * i}:{7 + 4 * i}], v56, s[28:31], {soff} offen')
    e.stamp('stored')
    e.stamp('rt_end')
    dump_stamps(e, 'k0', 4, 75, 62)
    e.stamp_names = e.stamp_names[:3]
    e.i('s_branch K0_END')

    for k, (lo, hi, spec) in enumerate(shuf):
        name, srd, pitch, nS, region, tile_base, ntg, inter = spec
        e.label(f'K0_SHUF{k}')
        e.i('v_lshrrev_b32 v1, 6, v0')
        e.i('v_readfirstlane_b32 s60, v1')
        e.i(f's_sub_u32 s61, s2, {lo}')
        if nS == 16:
            e.i('s_and_b32 s62, s61, 15')
            e.i('s_lshr_b32 s63, s61, 4')
        else:
            e.i('s_and_b32 s63, s61, 1')
            e.i('s_lshr_b32 s62, s61, 1')
        e.i('s_lshl_b32 s63, s63, 2')
        e.i('s_add_u32 s63, s63, s60')
        e.i(f's_mul_i32 s64, s62, {32 * pitch}')
        e.i('s_lshl_b32 s65, s63, 7')
        e.i('s_add_u32 s64, s64, s65')
        e.i('v_and_b32 v2, 63, v0')
        e.i('v_lshrrev_b32 v3, 3, v2')
        e.i(f'v_mul_u32_u24 v4, {pitch}, v3')
        e.i('v_and_b32 v5, 7, v2')
        e.i('v_lshl_add_u32 v4, v5, 4, v4')
        for i in range(4):
            if i:
                e.i(f's_add_u32 s64, s64, {8 * pitch}')
            e.i(f'buffer_load_dwordx4 v[{8 + 4 * i}:{11 + 4 * i}], v4, s[{srd}:{srd + 3}], s64 offen')
        e.i(f's_mul_i32 s66, s60, {K0_LDS_WAVE}')
        e.i('v_mul_u32_u24 v6, 144, v3')
        e.i('v_lshl_add_u32 v6, v5, 4, v6')
        e.i('v_add_u32 v6, s66, v6')
        e.i('v_lshrrev_b32 v7, 4, v2')
        e.i('v_bfe_u32 v24, v2, 2, 2')
        e.i(f'v_lshlrev_b32 v7, {3 if not inter else 2}, v7')
        e.i('v_add_u32 v7, v7, v24')
        e.i('v_mul_u32_u24 v7, 144, v7')
        e.i('v_and_b32 v24, 3, v2')
        e.i('v_lshl_add_u32 v7, v24, 3, v7')
        e.i('v_add_u32 v7, s66, v7')
        for i in range(4):
            e.i(f'ds_write_b128 v6, v[{8 + 4 * i}:{11 + 4 * i}] offset:{i * 8 * 144}')
        e.stamp('loaded')
        off2 = (4 if not inter else 16) * 144
        e.i(f's_mul_i32 s67, s63, {4 * nS * 1024}')
        e.i('s_lshl_b32 s68, s62, 10')
        e.i('s_add_u32 s67, s67, s68')
        e.i(f's_add_u32 s67, s67, {hx(region + tile_base * nS * 1024)}')
        e.i('v_lshlrev_b32 v25, 4, v2')
        for q in range(4):
            e.i(f'ds_read_b64_tr_b16 v[{28 + 4 * q}:{29 + 4 * q}], v7 offset:{q * 32}')
            e.i(f'ds_read_b64_tr_b16 v[{30 + 4 * q}:{31 + 4 * q}], v7 offset:{q * 32 + off2}')
        for q in range(4):
            if q:
                e.i(f's_add_u32 s67, s67, {nS * 1024}')
            e.i(f'buffer_store_dwordx4 v[{28 + 4 * q}:{31 + 4 * q}], v25, s[28:31], s67 offen')
        e.stamp('stored')
        e.stamp('rt_end')
        dump_stamps(e, 'k0', 4, 75, 62)
        e.stamp_names = e.stamp_names[:3]
        e.i('s_branch K0_END')
    e.label('K0_END')
    e.i('s_endpgm')
    return total


def build(path, parts=('k0', 'k1', 'k2'), stamps=False):
    launches = []
    body = Emitter()
    body.store_mod = os.environ.get('STORE_MOD', 'sc1')
    body.want_stamps = stamps
    descs = []
    total0 = gen_k0(body)
    launches.append(f'; @launch kernel={K0_NAME} grid=({total0},1,1) block=(256,1,1) lds={K0_LDS}')
    descs.append(kernel_desc(K0_NAME, 72 if stamps else 64, 102 if stamps else 96, 72 if stamps else 64))
    if 'k1' in parts:
        import gen_k1
        gen_k1.gen_k1(body)
        launches.append(f'; @launch kernel={K1_NAME} grid=(256,1,1) block=(512,1,1) lds={gen_k1.K1_LDS}')
        descs.append(kernel_desc(K1_NAME, gen_k1.K1_VGPRS, 102 if stamps else gen_k1.K1_SGPRS, gen_k1.K1_VGPRS))
    if 'k2' in parts:
        import gen_k2
        gen_k2.gen_k2(body)
        launches.append(f'; @launch kernel={K2_NAME} grid=(256,1,1) block=(256,1,1) lds={gen_k2.K2_LDS}')
        descs.append(kernel_desc(K2_NAME, gen_k2.K2_VGPRS + gen_k2.K2_AGPRS, 102 if stamps else gen_k2.K2_SGPRS, gen_k2.K2_VGPRS))
    head = ['; generated by gen/gen.py -- do not edit by hand'] + launches
    out = '\n'.join(head) + '\n.amdgcn_target "amdgcn-amd-amdhsa--gfx950"\n' + body.text()
    out += '.section .rodata,"a"\n.p2align 6\n' + '\n.p2align 6\n'.join(descs)
    open(path, 'w').write(out)
    print('wrote', path, len(out), 'bytes')
    if stamps:
        import json
        json.dump(getattr(body, 'all_stamp_names', {}), open(path + '.stamps.json', 'w'))


if __name__ == '__main__':
    path = sys.argv[1] if len(sys.argv) > 1 else 'k0.s'
    parts = tuple(sys.argv[2].split(',')) if len(sys.argv) > 2 else ('k0', 'k1', 'k2')
    build(path, parts, stamps=(len(sys.argv) > 3 and sys.argv[3] == 'stamps'))
```
